```python
import torch

def _softmax(x, axis=-1):
    return torch.softmax(x, dim=axis)

def _gelu(x):
    return torch.nn.functional.gelu(x, approximate='tanh')

def _silu(x):
    return torch.nn.functional.silu(x)

def _sigmoid(x):
    return torch.sigmoid(x)

def _layernorm(x, axis=-1, eps=1e-05):
    m = x.mean(dim=axis, keepdim=True)
    v = x.var(dim=axis, keepdim=True, unbiased=False)
    return (x - m) / torch.sqrt(v + eps)

def _scatter_add(tgt, idx, src, axis=0):
    return tgt.clone().index_add_(axis, idx, src)

def _segment_sum(src, seg, n):
    out = torch.zeros((n,) + src.shape[1:], dtype=src.dtype)
    return out.index_add_(0, seg, src)

def _pad(x, pw):
    flat = tuple((v for pair in reversed(pw) for v in pair))
    return torch.nn.functional.pad(x, flat)
kernel_name = 'adaLN_cond__grouped_kv_mqa__dense_activation_relu__prompt'

def setup_inputs():

    _w = lambda a: (lambda t: t.to(torch.bfloat16) if t.is_floating_point() else t)(torch.as_tensor(a))

    def _A_setup():
        B, S, D, H = (1, 2048, 1024, 32)
        Dh = D // H
        return {'x': _w((lambda *s: torch.randn(*s, dtype=torch.bfloat16) * 0.05)(B, S, D)), 'wq': _w((lambda *s: torch.randn(*s, dtype=torch.bfloat16) * 0.05)(D, H * Dh)), 'wk': _w((lambda *s: torch.randn(*s, dtype=torch.bfloat16) * 0.05)(D, Dh)), 'wv': _w((lambda *s: torch.randn(*s, dtype=torch.bfloat16) * 0.05)(D, Dh)), 'wo': _w((lambda *s: torch.randn(*s, dtype=torch.bfloat16) * 0.05)(H * Dh, D))}
    _A_in = _A_setup()

    def _B_setup():
        B, S, D, Dff = (1, 2048, 1024, 3584)
        return {'x': _w((lambda *s: torch.randn(*s, dtype=torch.bfloat16) * 0.05)(B, S, D)), 'w1': _w((lambda *s: torch.randn(*s, dtype=torch.bfloat16) * 0.05)(D, Dff)), 'w2': _w((lambda *s: torch.randn(*s, dtype=torch.bfloat16) * 0.05)(Dff, D))}
    _B_in = _B_setup()
    return {'A_x': _A_in['x'], 'A_wq': _A_in['wq'], 'A_wk': _A_in['wk'], 'A_wv': _A_in['wv'], 'A_wo': _A_in['wo'], 'B_x': _B_in['x'], 'B_w1': _B_in['w1'], 'B_w2': _B_in['w2'], 'c': _w((lambda *s: torch.randn(*s, dtype=torch.bfloat16) * 0.2)(1, 1024) * 8.0), 'w_mod': _w((lambda *s: torch.randn(*s, dtype=torch.bfloat16) * 0.2)(1024, 6 * 1024) * 1024 ** (-0.5) * 8.0)}

def reference(A_x, A_wq, A_wk, A_wv, A_wo, B_x, B_w1, B_w2, c, w_mod):

    def _A_ref(x, wq, wk, wv, wo):
        B, S, D = x.shape
        H = 32
        Dh = D // H
        q = (lambda x, *d: x.permute(*d))((x @ wq).reshape(B, S, H, Dh), 0, 2, 1, 3)
        k = x @ wk
        v = x @ wv
        scores = torch.einsum('bhqd,bkd->bhqk', q, k) * Dh ** (-0.5)
        p = _softmax(scores, axis=-1)
        o = torch.einsum('bhqk,bkd->bhqd', p, v)
        return (lambda x, *d: x.permute(*d))(o, 0, 2, 1, 3).reshape(B, S, H * Dh) @ wo

    def _B_ref(x, w1, w2):
        h = torch.einsum('bsd,df->bsf', x, w1)
        zero = torch.zeros_like(h)
        h = torch.maximum(h, zero)
        return torch.einsum('bsf,fd->bsd', h, w2)
    x = A_x
    mod = (_silu(c) @ w_mod).reshape(c.shape[0], 6, 1, -1)
    sa, ca, ga, sb, cb, gb = (mod[:, 0].clone(), mod[:, 1].clone(), mod[:, 2].clone(), mod[:, 3].clone(), mod[:, 4].clone(), mod[:, 5].clone())
    h = _layernorm(x, axis=-1) * (1 + ca) + sa
    x = x + ga * _A_ref(h, A_wq, A_wk, A_wv, A_wo)
    h = _layernorm(x, axis=-1) * (1 + cb) + sb
    x = x + gb * _B_ref(h, B_w1, B_w2)
    return x
```

```python
import re

def regs_of(tok):
    tok = tok.strip()
    neg = tok.lstrip('-')
    m = re.fullmatch(r'abs\((.*)\)|\|(.*)\|', neg)
    if m: neg = m.group(1) or m.group(2)
    m = re.fullmatch(r'([vas])(\d+)', neg)
    if m: return {(m.group(1), int(m.group(2)))}
    m = re.fullmatch(r'([vas])\[(\d+):(\d+)\]', neg)
    if m: return {(m.group(1), i) for i in range(int(m.group(2)), int(m.group(3)) + 1)}
    if neg in ('vcc', 'vcc_lo', 'vcc_hi'): return {('x', 'vcc')}
    if neg in ('exec', 'exec_lo', 'exec_hi'): return {('x', 'exec')}
    if neg == 'm0': return {('x', 'm0')}
    return set()

TRANS = ('v_exp_f32', 'v_log_f32', 'v_rcp_f32', 'v_rsq_f32', 'v_sqrt_f32', 'v_sin_f32', 'v_cos_f32', 'v_rcp_iflag_f32', 'v_exp_f16')

class Ins:
    def __init__(self, text):
        self.text = text
        t = text.split(';')[0].strip()
        self.label = t.endswith(':')
        self.directive = t.startswith('.') and not self.label
        self.op = ''
        self.dst = set(); self.src = set(); self.srcc = set(); self.srcab = set()
        self.cls = 'none'; self.passes = 0; self.ws = 0; self.dpp = False; self.wide_store = set(); self.sdwa_dst = False
        if not t or self.label or self.directive: return
        parts = t.split(None, 1)
        op = parts[0]; self.op = op
        rest = parts[1] if len(parts) > 1 else ''
        ops = []; depth = 0; cur = ''
        for ch in rest:
            if ch in '[(': depth += 1
            if ch in '])': depth -= 1
            if ch == ',' and depth == 0: ops.append(cur.strip()); cur = ''
            else: cur += ch
        if cur.strip(): ops.append(cur.strip())
        mods = ''
        if ops:
            sp = ops[-1].split(None, 1)
            if len(sp) > 1 and not ops[-1].startswith('hwreg'):
                ops[-1] = sp[0]; mods = sp[1]
        self.ops = ops; self.mods = mods
        R = [regs_of(o) for o in ops]
        self.ws = 1
        base = re.sub(r'_(e32|e64|dpp|sdwa)$', '', op)
        if op == 's_nop':
            self.cls = 'nop'; self.ws = int(ops[0], 0) + 1
        elif op.startswith('v_mfma') or op.startswith('v_smfmac'):
            self.cls = 'mfma'
            self.passes = 8 if '32x32' in op else 4
            if '4x4' in op: self.passes = 2
            self.dst = R[0]; self.srcab = R[1] | R[2]
            if op.startswith('v_smfmac'):
                self.srcc = R[0]; self.srcab |= R[3]
            else:
                self.srcc = R[3]
            self.src = self.srcab | self.srcc
        elif op.startswith('v_'):
            self.cls = 'valu'
            self.dpp = ('row_' in mods or 'quad_perm' in mods or op.endswith('_dpp'))
            if base.startswith('v_cmp'):
                self.dst = R[0]; self.src = set().union(*R[1:])
                if base.startswith('v_cmpx'): self.dst = self.dst | {('x', 'exec')}
            elif base.startswith('v_permlane') and 'swap' in base:
                self.dst = R[0] | R[1]; self.src = R[0] | R[1]; self.cls = 'permlane'
            elif base in ('v_readfirstlane_b32', 'v_readlane_b32'):
                self.dst = R[0]; self.src = set().union(*R[1:]); self.cls = 'readlane'
            elif base in ('v_add_co_u32', 'v_sub_co_u32', 'v_addc_co_u32', 'v_subb_co_u32', 'v_div_scale_f32', 'v_mad_u64_u32'):
                self.dst = R[0] | R[1]; self.src = set().union(*R[2:])
            else:
                self.dst = R[0]; self.src = set().union(*R[1:]) if len(R) > 1 else set()
                if base in ('v_fmac_f32', 'v_pk_fmac_f16', 'v_dot2c_f32_bf16', 'v_writelane_b32') or self.dpp or 'UNUSED_PRESERVE' in mods:
                    self.src |= R[0]
                if base == 'v_cndmask_b32' and len(ops) == 3: self.src |= {('x', 'vcc')}
                if 'dst_sel' in mods and 'dst_sel:DWORD' not in mods: self.sdwa_dst = True
            self.trans = base in TRANS
        elif op.startswith('ds_'):
            self.cls = 'ds'
            if op.startswith('ds_read') or op.startswith('ds_bpermute') or op.startswith('ds_permute') or op.startswith('ds_swizzle') or '_rtn' in op:
                self.dst = R[0]; self.src = set().union(*R[1:])
            else:
                self.src = set().union(*R)
        elif op.startswith('buffer_') or op.startswith('global_'):
            self.cls = 'vmem'
            islds = ' lds' in (' ' + mods) or '_lds_' in op
            if op in ('buffer_inv', 'buffer_wbl2'): pass
            elif islds:
                self.src = set().union(*R) | {('x', 'm0')}; self.cls = 'vmemlds'
            elif '_load' in op:
                self.dst = R[0]; self.src = set().union(*R[1:])
            elif 'atomic' in op and ('sc0' in mods):
                self.dst = R[0]; self.src = set().union(*R)
            else:
                self.src = set().union(*R)
                if 'x3' in op or 'x4' in op:
                    self.wide_store = R[0] if op.startswith('buffer_') else R[1]
        elif op.startswith('s_'):
            self.cls = 'salu'
            if op.startswith('s_cmp') or op.startswith('s_cbranch') or op in ('s_branch', 's_barrier', 's_waitcnt', 's_endpgm', 's_sleep', 's_setprio', 's_bitcmp1_b32', 's_bitcmp0_b32'):
                self.src = set().union(*R) if R else set()
            else:
                self.dst = R[0] if R else set(); self.src = set().union(*R[1:]) if len(R) > 1 else set()
                if 'saveexec' in op: self.dst = self.dst | {('x', 'exec')}
        else:
            raise ValueError('unknown instruction: ' + text)

def isv(rs): return {r for r in rs if r[0] in 'va'}
def iss(rs): return {r for r in rs if r[0] == 's' or r == ('x', 'vcc')}

def required(p, c):
    need = 0
    VAL = ('valu', 'permlane', 'readlane')
    if p.cls in VAL:
        vd = isv(p.dst); sd = iss(p.dst)
        if c.cls == 'mfma' and vd & c.src: need = max(need, 2)
        if c.cls == 'permlane' and vd & c.src: need = max(need, 2)
        if c.cls in VAL and c.dpp and vd & c.src: need = max(need, 2)
        if c.cls == 'readlane' and vd & c.src: need = max(need, 1)
        if p.cls == 'valu' and getattr(p, 'trans', False) and c.cls in VAL and not getattr(c, 'trans', False) and vd & c.src: need = max(need, 1)
        if p.sdwa_dst and c.cls in VAL and vd & (c.src | c.dst): need = max(need, 1)
        if sd:
            if c.cls in ('vmem', 'vmemlds') and sd & c.src: need = max(need, 5)
            if c.cls in VAL + ('mfma',) and sd & c.src: need = max(need, 2)
            if c.cls == 'readlane' and sd & c.src: need = max(need, 4)
            if c.cls == 'salu' and sd & c.src: need = max(need, 1)
        if ('x', 'exec') in p.dst:
            if c.cls == 'mfma': need = max(need, 4)
            if c.cls in ('readlane', 'permlane'): need = max(need, 4)
            if c.dpp: need = max(need, 5)
    if p.cls == 'valu' and p.op.startswith('v_dot'):
        vd = isv(p.dst)
        if c.cls in VAL + ('mfma', 'ds', 'vmem', 'vmemlds') and vd & (c.src | c.dst):
            same = c.op == p.op and not (vd & (regs_of(c.ops[1]) | regs_of(c.ops[2])))
            if not same: need = max(need, 3)
    if p.cls == 'mfma':
        n = {2: 5, 4: 8, 8: 12}[p.passes]
        if c.cls == 'mfma':
            if p.dst & c.srcab: need = max(need, n)
            if p.dst & c.srcc:
                if p.dst == c.srcc and p.passes == c.passes: need = max(need, 2 if p.passes == 2 else 0)
                else: need = max(need, {2: 4, 4: 6, 8: 10}[p.passes])
            elif p.dst & c.dst and not (p.dst == c.dst and p.passes == c.passes):
                need = max(need, {2: 4, 4: 6, 8: 10}[p.passes])
        elif c.cls in VAL + ('ds', 'vmem', 'vmemlds'):
            if p.dst & (c.src | c.dst): need = max(need, n)
        if c.cls in VAL and p.srcc & c.dst: need = max(need, {2: 1, 4: 3, 8: 7}[p.passes])
    if p.wide_store or (p.cls == 'ds' and p.op in ('ds_write_b128', 'ds_write_b96') and False):
        if c.cls in VAL + ('mfma',) and p.wide_store & c.dst: need = max(need, 2)
        elif p.wide_store & c.dst: need = max(need, 1)
    if p.cls == 'salu' and ('x', 'm0') in p.dst and (c.cls == 'vmemlds' or 'addtid' in c.op): need = max(need, 1)
    if p.cls == 'salu' and ('x', 'exec') in p.dst and False: pass
    return need

class Asm:
    def __init__(self, prefix=''):
        self.prefix = prefix
        self.lines = []
        self.nlab = 0
        self.inserted = []
    def e(self, text):
        for ln in text.split('\n'):
            ln = ln.strip()
            if ln: self.lines.append(ln)
    def __call__(self, text): self.e(text)
    def lab(self, name='L'):
        self.nlab += 1
        return f'.L{self.prefix}_{name}_{self.nlab}'
    def finalize(self, verbose=True):
        ins = [Ins(l) for l in self.lines]
        WIN = 22
        def lname(i): return i.text.split(';')[0].strip()[:-1]
        def isbr(i): return i.cls == 'salu' and (i.op.startswith('s_cbranch') or i.op == 's_branch')
        def worst_for(c, k):
            best = [0, None]
            def walk(j, dist, seen):
                while j >= 0 and dist < WIN:
                    i = ins[j]
                    if i.label:
                        for b in branches.get(lname(i), ()):
                            if id(b) not in seen:
                                walk(ins.index(b), dist, seen | {id(b)})
                        jj = j - 1
                        while jj >= 0 and ins[jj].cls == 'none' and not ins[jj].label: jj -= 1
                        if jj >= 0 and ins[jj].op in ('s_branch', 's_endpgm'): return
                    elif i.cls != 'none':
                        r = required(i, c)
                        if r - dist > best[0]: best[0] = r - dist; best[1] = i
                        dist += i.ws
                    j -= 1
            walk(k - 1, 0, frozenset())
            return best
        branches = {}
        for i in ins:
            if isbr(i): branches.setdefault(i.ops[0], []).append(i)
        k = 0
        while k < len(ins):
            c = ins[k]
            if c.cls not in ('none', 'nop'):
                n, why = worst_for(c, k)
                if n > 0:
                    self.inserted.append((n, why.text, c.text))
                    new = []
                    while n > 0:
                        m = min(n, 16); new.append(Ins(f's_nop {m-1}')); n -= m
                    ins[k:k] = new
                    k += len(new)
            k += 1
        if verbose:
            for w, p, c in self.inserted: print(f'  [hazard] +{w} nop between "{p}" and "{c}"')
        return '\n'.join(('' if i.label else '    ') + i.text for i in ins)
```

```python
from asm import Asm
NAME = 'adaLN_cond__grouped_kv_mqa__dense_activation_relu__prompt'
KA = dict(x=0, wq=8, wk=16, wv=24, wo=32, bx=40, w1=48, w2=56, c=64, wmod=72, out=80, dbg=88, ws=96)
SZ = dict(x=4194304, wq=2097152, wk=65536, wv=65536, wo=2097152, w1=7340032, w2=7340032, c=2048, wmod=12582912, out=4194304)
WS = dict(
    MODP=(0x000000, 4*6144*4),
    ST1=(0x018000, 2048*8),
    SC=(0x01C000, 2048),
    KV=(0x020000, 262144),
    FLAG=(0x060000, 0x8000),
    HO=(0x070000, 0x9100),
    STATS=(0x080000, 2048*32*8),
    H=(0x100000, 4194304),
    O=(0x500000, 4194304),
    X1=(0x900000, 4194304),
    A2=(0xD00000, 4194304),
    F=(0x1100000, 2048*3584*2),
    WQT=(0x2000000, 2097152),
    WOT=(0x2200000, 2097152),
    W1T=(0x2400000, 7340032),
    W2T=(0x2B00000, 7340032),
    UTP=(0x3200000, 16*2*16*224*4),
    XCH=(0x3300000, 256*32768),
    STAMP=(0x8000000, 0x100000),
)
NSPL = 4
KA1, KC2 = 1408, 768
LOG2E = 1.4426950408889634
import struct
def f32(x): return '0x%08x' % struct.unpack('<I', struct.pack('<f', x))[0]

def ldptr(a, s, name):
    a(f's_load_dwordx2 s[{s}:{s+1}], s[0:1], {KA[name]}')
def srd_in(a, d, s, name):
    a(f's_mov_b32 s{d}, s{s}\ns_mov_b32 s{d+1}, s{s+1}\ns_mov_b32 s{d+2}, {SZ[name]}\ns_mov_b32 s{d+3}, 0x20000')
def srd_ws(a, d, s, reg):
    off, size = WS[reg]
    a(f's_add_u32 s{d}, s{s}, {off}\ns_addc_u32 s{d+1}, s{s+1}, 0\ns_mov_b32 s{d+2}, {size}\ns_mov_b32 s{d+3}, 0x20000')
def rbf2(a, x, y, t):
    a(f'v_cvt_pk_bf16_f32 v{t}, v{x}, v{y}\nv_lshlrev_b32 v{x}, 16, v{t}\nv_and_b32 v{y}, 0xffff0000, v{t}')
def unpk(a, lo, hi, src):
    a(f'v_lshlrev_b32 v{lo}, 16, v{src}\nv_and_b32 v{hi}, 0xffff0000, v{src}')

class Kern:
    def __init__(self, name, grid, block, lds, vgpr, sgpr=96, agpr=0):
        self.name = name; self.grid = grid; self.block = block; self.lds = lds; self.vgpr = vgpr; self.sgpr = sgpr; self.agpr = agpr
        self.a = Asm(name[:2])
    def loader_first(self, ld, end):
        L = self.a.lines
        i0 = L.index(f'{ld}:'); i1 = L.index(f'{end}:')
        b = L.index(f's_cbranch_scc1 {ld}')
        cons = self.a.lab('cons')
        blk = L[i0+1:i1]
        new = L[:b] + [f's_cbranch_scc0 {cons}'] + blk + ['s_endpgm', f'{cons}:'] + L[b+1:i0] + L[i1:]
        self.a.lines = new
    def text(self, verbose):
        body = self.a.finalize(verbose)
        return f'.p2align 8\n{self.name}:\n{body}\n'
    def desc(self):
        acc = (self.vgpr + 3) // 4 * 4
        return f""".p2align 6
.amdhsa_kernel {self.name}
  .amdhsa_next_free_vgpr {acc + self.agpr if self.agpr else self.vgpr}
  .amdhsa_next_free_sgpr {self.sgpr}
  .amdhsa_accum_offset {acc}
  .amdhsa_group_segment_fixed_size 0
  .amdhsa_kernarg_size 104
  .amdhsa_user_sgpr_count 2
  .amdhsa_user_sgpr_kernarg_segment_ptr 1
  .amdhsa_system_sgpr_workgroup_id_x 1
.end_amdhsa_kernel
"""

STAMPS = False
def stamp(a, kidx, which, vtmp=(250, 251, 252), stmp=84, cyc=False):
    if not STAMPS: return
    s = stmp
    off = WS['STAMP'][0] + kidx * 0x10000 + which * 8
    a(f's_memtime s[{s+4}:{s+5}]' if cyc else f's_memrealtime s[{s+4}:{s+5}]')
    a(f's_load_dwordx2 s[{s+6}:{s+7}], s[0:1], {KA["ws"]}')
    a('s_waitcnt lgkmcnt(0)')
    a(f's_add_u32 s{s}, s{s+6}, {off}\ns_addc_u32 s{s+1}, s{s+7}, 0\ns_mov_b32 s{s+2}, 0x10000\ns_mov_b32 s{s+3}, 0x20000')
    a(f's_lshl_b32 s{s+8}, s2, 7\ns_lshl_b32 s{s+9}, s95, 4\ns_add_u32 s{s+8}, s{s+8}, s{s+9}')
    a(f'v_mov_b32 v{vtmp[0]}, s{s+4}\nv_mov_b32 v{vtmp[1]}, s{s+5}\nv_mov_b32 v{vtmp[2]}, 0')
    a(f'buffer_store_dwordx2 v[{vtmp[0]}:{vtmp[1]}], v{vtmp[2]}, s[{s}:{s+3}], s{s+8} offen')

def waveid(a):
    a('v_lshrrev_b32 v1, 6, v0\nv_readfirstlane_b32 s95, v1')

def prefetch(a, nwg, swg, items, sbase=8, vdst=8):
    a(f'v_lshlrev_b32 v1, 4, v0')
    for i, name in enumerate(items): ldptr(a, sbase + 4 + 2*i, name)
    a(f's_lshl_b32 s{swg}, s{swg}, 12')
    a('s_waitcnt lgkmcnt(0)')
    for i, name in enumerate(items):
        srd_in(a, sbase, sbase + 4 + 2*i, name)
        n = -(-SZ[name] // (nwg * 4096))
        a(f's_mov_b32 s3, s{swg}')
        if n <= 3:
            for j in range(n):
                a(f'buffer_load_dwordx4 v[{vdst}:{vdst+3}], v1, s[{sbase}:{sbase+3}], s3 offen')
                if j < n-1: a(f's_add_u32 s3, s3, {nwg*4096}')
        else:
            L = a.lab('pf')
            a(f'{L}:')
            a(f'buffer_load_dwordx4 v[{vdst}:{vdst+3}], v1, s[{sbase}:{sbase+3}], s3 offen')
            a(f's_add_u32 s3, s3, {nwg*4096}\ns_cmp_lt_u32 s3, {SZ[name]}\ns_cbranch_scc1 {L}')
    a('s_waitcnt vmcnt(0)')

ST = ''

QL = 0

K6MAP = 1
```

```python
from common import *
import common
from k12 import allreduce_g

def loader_loop(a, steps, NS, SB, extra=None, tail_hook=None, sstage=40, scnt=41, sk=None, trace=None):
    n = len(steps)
    def adv():
        a(f's_add_u32 s{sstage}, s{sstage}, {SB}\ns_cmp_eq_u32 s{sstage}, {NS*SB}\ns_cselect_b32 s{sstage}, 0, s{sstage}')
    a(f's_mov_b32 s{sstage}, 0')
    if trace is not None and common.STAMPS: a('s_mov_b32 s81, 0\nv_mov_b32 v249, 0')
    if sk is not None: stamp(a, sk, 0)
    for i in range(NS-1):
        steps[i][0](); adv()
    E = extra() if extra else 0
    plan = []
    for i in range(n):
        w = sum(steps[j][1] for j in range(i+1, min(i+NS-1, n))) + (E if i == 0 else 0)
        plan.append((min(63, w), steps[i+NS-1][0] if i+NS-1 < n else None))
    i = 0
    while i < n:
        j = i
        while j < n and plan[j] == plan[i]: j += 1
        w, fn = plan[i]; cnt = j - i
        if fn is None and tail_hook: tail_hook(); tail_hook = None
        if cnt > 1:
            L = a.lab('ld'); a(f's_mov_b32 s{scnt}, {cnt}\n{L}:')
        a(f's_waitcnt vmcnt({w})')
        if sk is not None and i == 0 and cnt == 1: stamp(a, sk, 1)
        a('s_barrier')
        if fn: fn(); adv()
        if trace is not None and common.STAMPS:
            a('s_memrealtime s[82:83]\ns_waitcnt lgkmcnt(0)\ns_mov_b32 m0, s81\ns_add_u32 s81, s81, 1\nv_writelane_b32 v249, s82, m0')
        if cnt > 1: a(f's_sub_u32 s{scnt}, s{scnt}, 1\ns_cmp_lg_u32 s{scnt}, 0\ns_cbranch_scc1 {L}')
        i = j
    if trace is not None and common.STAMPS:
        a(f's_add_u32 s84, s6, {0x9000000 + trace*0x40000}\ns_addc_u32 s85, s7, 0\ns_mov_b32 s86, 0x40000\ns_mov_b32 s87, 0x20000')
        a('s_lshl_b32 s88, s2, 10\ns_lshl_b32 s89, s42, 8\ns_add_u32 s88, s88, s89\nv_lshrrev_b32 v248, 2, v11\nbuffer_store_dword v249, v248, s[84:87], s88 offen')

def lin_copy(a, n, srd, soff, smbase, madd=0):
    for g in range(0, n, 4):
        a(f's_add_u32 m0, s{smbase}, {madd + g*1024}')
        so = f's{soff}'
        if g: a(f's_add_u32 s3, s{soff}, {g*1024}'); so = 's3'
        for i in range(g, min(g+4, n)): a(f'buffer_load_dwordx4 v11, s[{srd}:{srd+3}], {so} offen offset:{(i-g)*1024} lds')

class G:
    def __init__(s, TN, NS, kblocks, kperm, WB=None):
        s.TN, s.NS, s.kblocks, s.kperm = TN, NS, kblocks, kperm
        s.MT = 4; s.NT = TN // 32; s.NB = TN // 32
        s.WB = WB or 16 * s.NB * 256; s.SB = s.WB + 16384
    def loader_setup(s, a, sAoff):
        a('s_sub_u32 s42, s95, 4\nv_lshlrev_b32 v11, 4, v2')
        a(f's_mul_i32 s43, s42, {2*s.kblocks*1024}\ns_add_u32 s46, s{sAoff}, s43\ns_add_u32 s47, s46, {s.kblocks*1024}')
        a(f's_lshl_b32 s45, s42, 12\ns_add_u32 s45, s45, {s.WB}')
    def issue_fn(s, a, sW, sA, sWoff, sWl, NB=None):
        NB = NB or s.NB
        def issue():
            a('s_add_u32 s43, s40, s45')
            for j in range(2):
                a(f's_add_u32 m0, s43, {j*2048}')
                a(f'buffer_load_dwordx4 v11, s[{sA}:{sA+3}], s{46+j} offen lds')
                a(f'buffer_load_dwordx4 v11, s[{sA}:{sA+3}], s{46+j} offen offset:1024 lds')
                a(f's_add_u32 s{46+j}, s{46+j}, 2048')
            a(f's_add_u32 s43, s40, s{sWl}')
            lin_copy(a, NB, sW, sWoff, 43)
            a(f's_add_u32 s{sWoff}, s{sWoff}, {NB*4096}')
        return (issue, NB + 4)
    def consumer_setup(s, a, vb, j0mul=None):
        NB, MT = s.NB, s.MT
        j0mul = s.NT // 2 * 1 if False else (j0mul or s.TN // 2 // 16)
        a('s_lshr_b32 s38, s95, 1\ns_and_b32 s39, s95, 1')
        a('v_and_b32 v3, 15, v2\nv_lshrrev_b32 v4, 4, v2')
        a('v_lshrrev_b32 v5, 2, v2\nv_and_b32 v5, 3, v5\nv_and_b32 v6, 3, v2\nv_and_b32 v7, 1, v4')
        if s.kperm == 'std': a('v_mov_b32 v8, v4')
        else: a('v_lshrrev_b32 v8, 1, v4\nv_lshl_add_u32 v8, v8, 2, v7')
        a(f'v_mul_u32_u24 v8, {NB*256}, v8\nv_lshl_add_u32 v8, v5, 6, v8\nv_lshl_add_u32 v8, v6, 3, v8')
        a(f's_mul_i32 s40, s39, {j0mul}')
        a(f's_and_b32 s41, s40, 1\nv_xor_b32 v7, s41, v7\nv_lshl_add_u32 v8, v7, 5, v8')
        a(f's_lshr_b32 s41, s40, 1\ns_lshl_b32 s41, s41, 8\nv_add_u32 v{vb}, s41, v8')
        a(f'v_xor_b32 v8, 32, v8\ns_add_u32 s41, s40, 1\ns_lshr_b32 s41, s41, 1\ns_lshl_b32 s41, s41, 8\nv_add_u32 v{vb+1}, s41, v8')
        a(f's_mul_i32 s41, s38, {MT*2048}\ns_add_u32 s41, s41, {s.WB}\nv_lshlrev_b32 v8, 4, v2\nv_add_u32 v{vb+2}, s41, v8')
        a(f's_mov_b32 s43, {s.SB}\ns_mov_b32 s40, 0')
    def reads(s, vb, R, sub, NT, NB, nbs=256):
        MT = s.MT; d2 = 4 if s.kperm == 'std' else 2
        Wf = lambda nt: R + 4*MT + 4*nt
        rw = lambda nt: [f'ds_read_b64_tr_b16 v[{Wf(nt)+2*h}:{Wf(nt)+2*h+1}], v{vb+(nt&1)} offset:{(sub*8+h*d2)*NB*256 + (nt>>1)*nbs}' for h in range(2)]
        ra = lambda mt: f'ds_read_b128 v[{R+4*mt}:{R+4*mt+3}], v{vb+2} offset:{mt*2048+sub*1024}'
        out = rw(0) + [ra(mt) for mt in range(MT)]
        for nt in range(1, NT): out += rw(nt)
        return out
    def mfmas(s, ACC, R, NT, aNT):
        MT = s.MT
        return [f'v_mfma_f32_16x16x32_bf16 v[{ACC+4*(mt*aNT+nt)}:{ACC+4*(mt*aNT+nt)+3}], v[{R+4*MT+4*nt}:{R+4*MT+4*nt+3}], v[{R+4*mt}:{R+4*mt+3}], v[{ACC+4*(mt*aNT+nt)}:{ACC+4*(mt*aNT+nt)+3}]'
                for nt in range(NT) for mt in range(MT)]
    def adv(s, vb):
        return [f's_add_u32 s40, s40, {s.SB}', f's_cmp_eq_u32 s40, {s.NS*s.SB}', f's_cselect_b32 s42, {-(s.NS-1)*s.SB & 0xffffffff:#x}, s43', 's_cselect_b32 s40, 0, s40',
                f'v_add_u32 v{vb}, s42, v{vb}', f'v_add_u32 v{vb+1}, s42, v{vb+1}', f'v_add_u32 v{vb+2}, s42, v{vb+2}', 's_sub_u32 s41, s41, 1', 's_cmp_eq_u32 s41, 0']
    def loop(s, a, n, mP, mQ, rP, rQ, vb, last_pre=(), last_reads=None, first_extra=(), xP=(), xQ=()):
        L = a.lab('gl'); T = a.lab('gt')
        a(f's_mov_b32 s41, {n}')
        if n > 1: a(f'{L}:')
        a('s_waitcnt lgkmcnt(0)')
        if xP: inter2(a, mP, rQ, list(xP), s.adv(vb))
        else: inter(a, mP, rQ, list(first_extra) + s.adv(vb))
        a('s_waitcnt lgkmcnt(0)')
        if n > 1:
            a(f's_cbranch_scc1 {T}\ns_barrier')
            inter(a, mQ, rP)
            a(f's_branch {L}\n{T}:')
        if last_reads is None:
            inter2(a, mQ, [], list(xQ), [])
        else:
            for x in last_pre: a(x)
            a('s_barrier')
            if xQ: inter2(a, mQ, last_reads, list(xQ), [])
            else: inter(a, mQ, last_reads)

def inter2(a, m, r, x, tail):
    n = len(m); r = list(r); pr = -(-len(r) // n) if r else 0; done = 0
    for i, y in enumerate(m):
        a(y)
        for _ in range(pr):
            if r: a(r.pop(0))
        upto = (len(x) * (i+1)) // n
        for z in x[done:upto]: a(z)
        done = upto
    for z in tail: a(z)

def inter(a, m, r, extra=()):
    per = -(-len(r) // len(m))
    r = list(r); extra = list(extra)
    for x in m:
        a(x)
        for _ in range(per):
            if r: a(r.pop(0))
            elif extra: a(extra.pop(0))
    for x in r + extra: a(x)

def ld_mod8(a, dst, srd, voff, mi, sF):
    for p in range(NSPL):
        d = dst + 8*p
        a(f's_add_u32 s44, s{sF}, {(p*6144 + mi*1024)*4}')
        a(f'buffer_load_dwordx4 v[{d}:{d+3}], v{voff}, s[{srd}:{srd+3}], s44 offen\nbuffer_load_dwordx4 v[{d+4}:{d+7}], v{voff}, s[{srd}:{srd+3}], s44 offen offset:64')
def fin_mod8(a, dst, plus1):
    for j in range(0, 8, 2):
        a(f'v_pk_add_f32 v[{dst+j}:{dst+j+1}], v[{dst+j}:{dst+j+1}], v[{dst+8+j}:{dst+9+j}]\nv_pk_add_f32 v[{dst+16+j}:{dst+17+j}], v[{dst+16+j}:{dst+17+j}], v[{dst+24+j}:{dst+25+j}]')
    for j in range(0, 8, 2): a(f'v_pk_add_f32 v[{dst+j}:{dst+j+1}], v[{dst+j}:{dst+j+1}], v[{dst+16+j}:{dst+17+j}]')
    for j in range(4): rbf2(a, dst+2*j, dst+2*j+1, dst+8)
    if plus1:
        for j in range(8): a(f'v_add_f32 v{dst+j}, 1.0, v{dst+j}')
        for j in range(4): rbf2(a, dst+2*j, dst+2*j+1, dst+8)

def map_4x8(a):
    a('s_and_b32 s14, s2, 7\ns_lshr_b32 s15, s2, 3')
    a('s_lshr_b32 s12, s14, 1\ns_lshl_b32 s12, s12, 2\ns_and_b32 s3, s15, 3\ns_add_u32 s12, s12, s3')
    a('s_and_b32 s13, s14, 1\ns_lshl_b32 s13, s13, 3\ns_lshr_b32 s3, s15, 2\ns_add_u32 s13, s13, s3')
def map_8x4(a):
    a('s_and_b32 s14, s2, 7\ns_lshr_b32 s15, s2, 3')
    a('s_and_b32 s12, s14, 1\ns_lshl_b32 s12, s12, 3\ns_and_b32 s3, s15, 7\ns_add_u32 s12, s12, s3')
    a('s_lshr_b32 s13, s14, 1\ns_lshl_b32 s13, s13, 2\ns_lshr_b32 s3, s15, 3\ns_add_u32 s13, s13, s3')

def k4(NS=4):
    g = G(64, NS, 32, 'o')
    XT = g.NS*g.SB
    UTL = XT + 16384
    k = Kern('k4_wo_kernel', 256, 512, UTL + 32768, 192 if not common.STAMPS else 256)
    a = k.a
    end = a.lab('end'); ld = a.lab('loader')
    a(f's_cmp_ge_u32 s2, 256\ns_cbranch_scc1 {end}')
    waveid(a); stamp(a, 3, 0)
    ldptr(a, 6, 'ws'); ldptr(a, 8, 'x')
    map_4x8(a)
    a('v_and_b32 v2, 63, v0')
    a(f's_cmp_ge_u32 s95, 4\ns_cbranch_scc1 {ld}')
    VB, ACC, P, Q, GA, G2, XR = 10, 16, 48, 72, 96, 128, 160
    g.consumer_setup(a, VB)
    a('s_lshl_b32 s46, s13, 1\ns_add_u32 s46, s46, s39')
    a('s_lshl_b32 s47, s12, 3\ns_lshl_b32 s3, s38, 2\ns_add_u32 s47, s47, s3')
    a(f'v_lshlrev_b32 v5, 7, v3\nv_lshl_add_u32 v5, v4, 3, v5\ns_lshl_b32 s3, s38, 13\ns_lshl_b32 s48, s39, 6\ns_add_u32 s3, s3, s48\ns_add_u32 s3, s3, {XT}\nv_add_u32 v13, s3, v5')
    a('v_lshlrev_b32 v6, 4, v4')
    for j in range(32): a(f'v_mov_b32 v{ACC+j}, 0')
    a('s_waitcnt lgkmcnt(0)')
    srd_ws(a, 20, 6, 'MODP'); srd_ws(a, 24, 6, 'X1'); srd_ws(a, 28, 6, 'A2'); srd_ws(a, 32, 6, 'STATS')
    a('s_lshl_b32 s49, s46, 7')
    stamp(a, 13, 0)
    a('s_barrier')
    stamp(a, 8, 0)
    rP, rQ = g.reads(VB, P, 0, 2, 2), g.reads(VB, Q, 1, 2, 2)
    for x in rP: a(x)
    ld_mod8(a, GA, 20, 6, 2, 49); ld_mod8(a, G2, 20, 6, 4, 49)
    mP, mQ = g.mfmas(ACC, P, 2, 2), g.mfmas(ACC, Q, 2, 2)
    g.loop(a, 8, mP, mQ, rP, rQ, VB, last_reads=rP)
    for mt in range(4): a(f'ds_read2_b64 v[{XR+4*mt}:{XR+4*mt+3}], v13 offset0:{0} offset1:4' if mt == 0 else f'v_add_u32 v13, 2048, v13\nds_read2_b64 v[{XR+4*mt}:{XR+4*mt+3}], v13 offset0:0 offset1:4')
    a('s_waitcnt vmcnt(0)')
    fin_mod8(a, GA, False); fin_mod8(a, G2, True)
    a('v_lshlrev_b32 v5, 4, v2')
    a('s_lshl_b32 s48, s47, 5\ns_add_u32 s48, s48, s46\ns_lshl_b32 s48, s48, 10')
    a('v_lshlrev_b32 v6, 12, v4\nv_lshl_add_u32 v6, v3, 3, v6')
    a('s_lshl_b32 s49, s47, 12\ns_lshl_b32 s3, s46, 7\ns_add_u32 s49, s49, s3')
    a('s_waitcnt lgkmcnt(0)')
    XU = 104
    xu = lambda mt: XU + 8*mt if mt < 3 else 136
    for mt in range(4):
        for j in range(4): unpk(a, xu(mt)+2*j, xu(mt)+2*j+1, XR+4*mt+j)
    g.loop(a, 8, mP, mQ, rP, rQ, VB)
    stamp(a, 8, 1)
    S1, S2 = 144, 148
    for mt in range(4):
        U = xu(mt); PK = 64 + 8*(mt % 2)
        for j in range(0, 8, 2): a(f'v_pk_fma_f32 v[{U+j}:{U+j+1}], v[{GA+j}:{GA+j+1}], v[{ACC+8*mt+j}:{ACC+8*mt+j+1}], v[{U+j}:{U+j+1}]')
        for j in range(4): a(f'v_cvt_pk_bf16_f32 v{PK+j}, v{U+2*j}, v{U+2*j+1}')
        a(f'buffer_store_dwordx4 v[{PK}:{PK+3}], v5, s[24:27], s48 offen{common.ST}')
        for j in range(4): unpk(a, U+2*j, U+2*j+1, PK+j)
        a(f'v_pk_add_f32 v[56:57], v[{U}:{U+1}], v[{U+2}:{U+3}]\nv_pk_add_f32 v[58:59], v[{U+4}:{U+5}], v[{U+6}:{U+7}]')
        a(f'v_pk_mul_f32 v[60:61], v[{U}:{U+1}], v[{U}:{U+1}]\nv_pk_mul_f32 v[62:63], v[{U+2}:{U+3}], v[{U+2}:{U+3}]')
        a(f'v_pk_fma_f32 v[60:61], v[{U+4}:{U+5}], v[{U+4}:{U+5}], v[60:61]\nv_pk_fma_f32 v[62:63], v[{U+6}:{U+7}], v[{U+6}:{U+7}], v[62:63]')
        for j in range(0, 8, 2): a(f'v_pk_mul_f32 v[{U+j}:{U+j+1}], v[{U+j}:{U+j+1}], v[{G2+j}:{G2+j+1}]')
        a('v_pk_add_f32 v[56:57], v[56:57], v[58:59]\nv_pk_add_f32 v[60:61], v[60:61], v[62:63]')
        for j in range(4): a(f'v_cvt_pk_bf16_f32 v{PK+4+j}, v{U+2*j}, v{U+2*j+1}')
        a(f'buffer_store_dwordx4 v[{PK+4}:{PK+7}], v5, s[28:31], s48 offen{common.ST}')
        a(f'v_add_f32 v{S1+mt}, v56, v57\nv_add_f32 v{S2+mt}, v60, v61')
        if mt < 3: a('s_add_u32 s48, s48, 32768')
    for S in (S1, S2):
        a(f'v_permlane32_swap_b32 v{S}, v{S+2}\nv_permlane32_swap_b32 v{S+1}, v{S+3}')
        a(f'v_add_f32 v{S}, v{S}, v{S+2}\nv_add_f32 v{S+1}, v{S+1}, v{S+3}')
        a(f'v_permlane16_swap_b32 v{S}, v{S+1}\nv_add_f32 v{S}, v{S}, v{S+1}')
    a(f'v_mov_b32 v{S1+1}, v{S2}')
    a(f'buffer_store_dwordx2 v[{S1}:{S1+1}], v6, s[32:35], s49 offen{common.ST}')
    stamp(a, 3, 1)
    a('s_endpgm')
    a(f'{ld}:')
    a('s_lshl_b32 s37, s12, 18')
    g.loader_setup(a, 37)
    a('s_lshl_b32 s44, s42, 11\ns_lshl_b32 s36, s13, 17\ns_add_u32 s36, s36, s44')
    a('s_waitcnt lgkmcnt(0)')
    srd_ws(a, 16, 6, 'WOT'); srd_ws(a, 20, 6, 'O')
    def extra():
        srd_in(a, 24, 8, 'x')
        a('v_lshrrev_b32 v12, 3, v2\nv_mul_u32_u24 v12, 1920, v12\nv_add_u32 v12, v12, v11')
        a('s_lshl_b32 s50, s12, 18\ns_lshl_b32 s3, s42, 16\ns_add_u32 s50, s50, s3\ns_lshl_b32 s3, s13, 7\ns_add_u32 s50, s50, s3')
        a(f's_lshl_b32 s51, s42, 12\ns_add_u32 s51, s51, {XT}')
        for i in range(4):
            a(f's_add_u32 m0, s51, {i*1024}\nbuffer_load_dwordx4 v12, s[24:27], s50 offen lds')
            if i < 3: a('s_add_u32 s50, s50, 16384')
        srd_ws(a, 24, 6, 'MODP')
        a('v_and_b32 v3, 15, v2\nv_lshrrev_b32 v4, 4, v2\nv_lshlrev_b32 v5, 12, v3\nv_sub_u32 v5, 16384, v5\nv_lshl_add_u32 v5, v4, 4, v5')
        a('v_mov_b32 v6, 0x7ff00000\nv_cmp_gt_u32 vcc, 2, v3\nv_cndmask_b32 v5, v6, v5, vcc')
        a('s_lshr_b32 s58, s2, 4\ns_lshl_b32 s59, s58, 8')
        for sub in range(2):
            for p_ in range(NSPL):
                d = MB + 32*sub + 8*p_
                a(f's_add_u32 s3, s59, {(p_*6144 + 32*sub)*4}')
                a(f'buffer_load_dwordx4 v[{d}:{d+3}], v5, s[24:27], s3 offen\nbuffer_load_dwordx4 v[{d+4}:{d+7}], v5, s[24:27], s3 offen offset:64')
        a('v_mul_u32_u24 v13, 14336, v3\nv_lshl_add_u32 v13, v4, 4, v13\nv_cndmask_b32 v13, v6, v13, vcc')
        a('v_mul_u32_u24 v14, 1792, v4\nv_lshl_add_u32 v14, v3, 4, v14')
        a('v_lshrrev_b32 v7, 2, v2\nv_and_b32 v7, 3, v7\nv_and_b32 v8, 3, v2\nv_lshlrev_b32 v15, 8, v4\nv_lshl_add_u32 v15, v7, 6, v15\nv_lshl_add_u32 v15, v8, 3, v15')
        a(f'v_and_b32 v7, 1, v4\nv_lshl_add_u32 v15, v7, 5, v15\ns_lshl_b32 s51, s42, 13\ns_add_u32 s51, s51, {UTL}\nv_add_u32 v15, s51, v15\nv_xor_b32 v16, 32, v15')
        a('s_and_b32 s59, s2, 15\ns_lshl_b32 s60, s59, 4\ns_add_u32 s60, s60, s58\ns_mul_i32 s60, s60, 28672\ns_lshl_b32 s3, s42, 9\ns_add_u32 s60, s60, s3')
        a('s_lshl_b32 s61, s59, 5\ns_add_u32 s61, s61, s58\ns_mul_i32 s61, s61, 896\ns_lshl_b32 s3, s42, 8\ns_add_u32 s61, s61, s3')
        srd_ws(a, 24, 6, 'W1T'); srd_ws(a, 28, 6, 'UTP')
        return 20
    MB, BF = 32, 96
    def tail():
        for b in range(2):
            for q in range(4):
                a(f's_add_u32 m0, s51, {b*4096 + q*1024}\ns_add_u32 s3, s60, {b*256 + q*7168}\nbuffer_load_dwordx4 v14, s[24:27], s3 offen lds')
        a('v_cmp_eq_u32 vcc, 0, v3\nv_cndmask_b32 v8, 0, 1.0, vcc')
        def fin(sub):
            d = MB + 32*sub
            for j in range(0, 8, 2):
                a(f'v_pk_add_f32 v[{d+j}:{d+j+1}], v[{d+j}:{d+j+1}], v[{d+8+j}:{d+9+j}]\nv_pk_add_f32 v[{d+16+j}:{d+17+j}], v[{d+16+j}:{d+17+j}], v[{d+24+j}:{d+25+j}]')
            for j in range(0, 8, 2): a(f'v_pk_add_f32 v[{d+j}:{d+j+1}], v[{d+j}:{d+j+1}], v[{d+16+j}:{d+17+j}]')
            for j in range(4): rbf2(a, d+2*j, d+2*j+1, d+8)
            for j in range(0, 8, 2): a(f'v_pk_add_f32 v[{d+j}:{d+j+1}], v[{d+j}:{d+j+1}], v[8:9] op_sel_hi:[1,0]')
            for j in range(4): a(f'v_cvt_pk_bf16_f32 v{BF+4*sub+j}, v{d+2*j}, v{d+2*j+1}')
        for j in range(NS-1):
            a(f's_waitcnt vmcnt({6*(NS-2-j)+8})\ns_barrier')
            if j < 2: fin(j)
        a('s_waitcnt vmcnt(0)')
        AF, DD = 104, 144
        for nt in range(4):
            for sub in range(2):
                r = AF + 8*nt + 4*sub
                for h in range(2): a(f'ds_read_b64_tr_b16 v[{r+2*h}:{r+2*h+1}], v{15+(nt&1)} offset:{(nt>>1)*4096 + (sub*8+h*4)*256}')
        for nt in range(4):
            a(f's_waitcnt lgkmcnt({12-4*nt})')
            for sub in range(2):
                r = AF + 8*nt + 4*sub
                a(f'v_mfma_f32_16x16x32_bf16 v[{DD+4*nt}:{DD+4*nt+3}], v[{r}:{r+3}], v[{BF+4*sub}:{BF+4*sub+3}], ' + (f'v[{DD+4*nt}:{DD+4*nt+3}]' if sub else '0'))
        dn = a.lab('dn')
        for nt in range(4):
            if nt == 2: a(f's_cmp_eq_u32 s42, 3\ns_cbranch_scc1 {dn}')
            a(f'buffer_store_dwordx4 v[{DD+4*nt}:{DD+4*nt+3}], v13, s[28:31], s61 offen offset:{64*nt}')
        a(f'{dn}:')
        stamp(a, 3, 1)
        a('s_endpgm')
    assert NS >= 3
    loader_loop(a, [g.issue_fn(a, 16, 20, 36, 44)]*16, NS, g.SB, extra=extra, tail_hook=tail, sk=13)
    stamp(a, 3, 1)
    a(f'{end}:\ns_endpgm')
    k.loader_first(ld, end)
    return k

def k5(fst=None, fst2=None):
    fst = common.ST if fst is None else fst
    fst2 = fst if fst2 is None else fst2
    g = G(224, 3, 32, 'std')
    LRS = g.NS*g.SB; LUT = LRS + 1024
    k = Kern('k5_ff1_kernel', 256, 512, LUT + 2048, 256)
    a = k.a
    end = a.lab('end'); ld = a.lab('loader')
    a(f's_cmp_ge_u32 s2, 256\ns_cbranch_scc1 {end}')
    waveid(a); stamp(a, 4, 0)
    ldptr(a, 6, 'ws')
    map_8x4(a)
    a('v_and_b32 v2, 63, v0')
    a(f's_cmp_ge_u32 s95, 4\ns_cbranch_scc1 {ld}')
    a('s_setprio 1')
    VB, ACC, P, Q = 10, 16, 128, 172
    g.consumer_setup(a, VB)
    for j in range(112): a(f'v_mov_b32 v{ACC+j}, 0')
    a('s_waitcnt lgkmcnt(0)')
    srd_ws(a, 24, 6, 'F')
    a(f's_lshl_b32 s3, s38, 9\ns_add_u32 s3, s3, {LRS}\nv_lshlrev_b32 v13, 3, v3\nv_add_u32 v13, s3, v13')
    a(f's_mul_i32 s3, s39, 448\ns_add_u32 s3, s3, {LUT}\nv_lshlrev_b32 v14, 4, v4\nv_add_u32 v14, s3, v14')
    a('v_lshlrev_b32 v15, 4, v2')
    a('s_lshl_b32 s46, s12, 3\ns_lshl_b32 s3, s38, 2\ns_add_u32 s46, s46, s3\ns_mul_i32 s46, s46, 112')
    a('s_mul_i32 s3, s13, 7\ns_add_u32 s46, s46, s3\ns_mul_i32 s3, s39, 3\ns_add_u32 s46, s46, s3\ns_lshl_b32 s46, s46, 10')
    stamp(a, 14, 0)
    a('s_barrier')
    stamp(a, 9, 0); stamp(a, 22, 0, cyc=True)
    rP, rQ = g.reads(VB, P, 0, 7, 7), g.reads(VB, Q, 1, 7, 7)
    for x in rP: a(x)
    g.loop(a, 16, g.mfmas(ACC, P, 7, 7), g.mfmas(ACC, Q, 7, 7)[:0] + g.mfmas(ACC, Q, 7, 7), rP, rQ, VB)
    stamp(a, 9, 1); stamp(a, 22, 1, cyc=True)
    RS, U, T, C = 128, 136, 216, 164
    for mt in range(4): a(f'ds_read_b64 v[{RS+2*mt}:{RS+2*mt+1}], v13 offset:{mt*128}')
    for nt in range(7):
        a(f'ds_read_b128 v[{U+4*nt}:{U+4*nt+3}], v14 offset:{nt*64}\nds_read_b128 v[{T+4*nt}:{T+4*nt+3}], v14 offset:{1024+nt*64}')
    a('s_waitcnt lgkmcnt(0)')
    PK = 172
    for mt in range(4):
        pk = PK + 14*(mt % 2)
        for nt in range(7):
            A = ACC + 4*(mt*7+nt)
            for h in range(2):
                c = C + 2*((2*nt+h) % 4)
                a(f'v_pk_fma_f32 v[{c}:{c+1}], v[{RS+2*mt}:{RS+2*mt+1}], v[{U+4*nt+2*h}:{U+4*nt+2*h+1}], v[{T+4*nt+2*h}:{T+4*nt+2*h+1}] op_sel:[1,0,0] op_sel_hi:[1,1,1] neg_lo:[1,0,0] neg_hi:[1,0,0]')
                a(f'v_pk_fma_f32 v[{c}:{c+1}], v[{RS+2*mt}:{RS+2*mt+1}], v[{A+2*h}:{A+2*h+1}], v[{c}:{c+1}] op_sel:[0,0,0] op_sel_hi:[0,1,1]')
                a(f'v_cvt_pk_bf16_f32 v{pk+2*nt+h}, v{c}, v{c+1}')
                a(f'v_pk_max_i16 v{pk+2*nt+h}, v{pk+2*nt+h}, 0')
        l1 = a.lab('s1'); l2 = a.lab('s2')
        a(f's_cmp_eq_u32 s39, 1\ns_cbranch_scc1 {l1}')
        for b in range(3): a(f'buffer_store_dwordx4 v[{pk+4*b}:{pk+4*b+3}], v15, s[24:27], s46 offen offset:{b*1024}{fst}')
        a(f'buffer_store_dwordx2 v[{pk+12}:{pk+13}], v15, s[24:27], s46 offen offset:3072{fst2}')
        a(f's_branch {l2}\n{l1}:')
        a(f'buffer_store_dwordx2 v[{pk}:{pk+1}], v15, s[24:27], s46 offen offset:8{fst2}')
        for b in range(3): a(f'buffer_store_dwordx4 v[{pk+2+4*b}:{pk+5+4*b}], v15, s[24:27], s46 offen offset:{(b+1)*1024}{fst}')
        a(f'{l2}:')
        if mt < 3: a(f's_add_u32 s46, s46, {112*1024}')
    stamp(a, 4, 1)
    a('s_endpgm')
    a(f'{ld}:')
    a('s_lshl_b32 s37, s12, 18')
    g.loader_setup(a, 37)
    a(f's_mul_i32 s44, s42, 7168\ns_mul_i32 s36, s13, {16*28672}\ns_add_u32 s36, s36, s44')
    a('s_waitcnt lgkmcnt(0)')
    srd_ws(a, 16, 6, 'W1T'); srd_ws(a, 20, 6, 'A2')
    UP = 64
    def extra():
        srd_ws(a, 24, 6, 'STATS'); srd_ws(a, 28, 6, 'UTP')
        a('s_lshl_b32 s50, s12, 3\ns_lshl_b32 s3, s42, 1\ns_add_u32 s50, s50, s3\ns_lshl_b32 s50, s50, 12')
        for tt in range(2):
            for q in range(4): a(f'buffer_load_dwordx4 v[{32+16*tt+4*q}:{35+16*tt+4*q}], v11, s[24:27], s50 offen offset:{q*1024}')
            if tt == 0: a('s_add_u32 s50, s50, 4096')
        a(f's_lshl_b32 s50, s13, 1\ns_and_b32 s51, s42, 1\ns_add_u32 s50, s50, s51\ns_lshl_b32 s50, s50, 1\ns_lshr_b32 s3, s42, 1\ns_add_u32 s50, s50, s3\ns_mul_i32 s50, s50, {8*896}')
        for q in range(8):
            if q == 4: a(f's_add_u32 s50, s50, {4*896}')
            a(f'buffer_load_dwordx4 v[{UP+4*q}:{UP+4*q+3}], v11, s[28:31], s50 offen offset:{(q%4)*896}')
        return 16
    def tail():
        for tt in range(2):
            b = 32 + 16*tt
            for j in (0, 2): a(f'v_pk_add_f32 v[{b+j}:{b+j+1}], v[{b+j}:{b+j+1}], v[{b+4+j}:{b+5+j}]\nv_pk_add_f32 v[{b+8+j}:{b+9+j}], v[{b+8+j}:{b+9+j}], v[{b+12+j}:{b+13+j}]')
            for j in (0, 2): a(f'v_pk_add_f32 v[{b+j}:{b+j+1}], v[{b+j}:{b+j+1}], v[{b+8+j}:{b+9+j}]')
        R8 = [32, 33, 34, 35, 48, 49, 50, 51]
        for r in R8: a(f'v_add_f32_dpp v{r}, v{r}, v{r} row_ror:8 row_mask:0xf bank_mask:0xf')
        for sw in ('v_permlane16_swap_b32', 'v_permlane32_swap_b32'):
            for r in R8: a(f'v_mov_b32 v{r+4}, v{r}')
            for r in R8: a(f'{sw} v{r+4}, v{r}')
            for r in R8: a(f'v_add_f32 v{r}, v{r}, v{r+4}')
        for n in (16, 8, 4):
            for j in range(0, n, 2): a(f'v_pk_add_f32 v[{UP+j}:{UP+j+1}], v[{UP+j}:{UP+j+1}], v[{UP+n+j}:{UP+n+j+1}]')
        for b in (32, 34, 48, 50):
            a(f'v_mul_f32 v{b+4}, {f32(1/1024)}, v{b}')
            a(f'v_mov_b32 v{b+5}, {f32(1e-5)}\nv_fmac_f32 v{b+5}, {f32(1/1024)}, v{b+1}')
            a(f'v_fma_f32 v{b+5}, -v{b+4}, v{b+4}, v{b+5}\nv_max_f32 v{b+5}, {f32(1e-5)}, v{b+5}\nv_rsq_f32 v{b}, v{b+5}')
        for b in (32, 34, 48, 50): a(f'v_mul_f32 v{b+1}, v{b+4}, v{b}')
        a(f'v_and_b32 v30, 7, v2\nv_lshlrev_b32 v30, 4, v30\ns_lshl_b32 s3, s42, 8\ns_add_u32 s3, s3, {LRS}\nv_add_u32 v30, s3, v30')
        a('ds_write_b128 v30, v[32:35]\nds_write_b128 v30, v[48:51] offset:128')
        a(f's_lshl_b32 s3, s51, 10\ns_add_u32 s3, s3, {LUT}\nv_add_u32 v30, s3, v11')
        sk = a.lab('uw')
        a(f's_cmp_lt_u32 s42, 2\ns_cbranch_scc1 {sk}\nds_write_b128 v30, v[{UP}:{UP+3}]\n{sk}:')
        a('s_waitcnt vmcnt(11) lgkmcnt(0)\ns_barrier')
        sk = a.lab('uw')
        a(f's_cmp_ge_u32 s42, 2\ns_cbranch_scc1 {sk}\nds_read_b128 v[{UP+4}:{UP+7}], v30\ns_waitcnt lgkmcnt(0)')
        for j in (0, 2): a(f'v_pk_add_f32 v[{UP+j}:{UP+j+1}], v[{UP+j}:{UP+j+1}], v[{UP+4+j}:{UP+5+j}]')
        a(f'ds_write_b128 v30, v[{UP}:{UP+3}]\n{sk}:')
        a('s_waitcnt vmcnt(0) lgkmcnt(0)\ns_barrier\ns_endpgm')
    steps = [g.issue_fn(a, 16, 20, 36, 44)]*16
    loader_loop(a, steps, 3, g.SB, extra=extra, tail_hook=tail, sk=14)
    a(f'{end}:\ns_endpgm')
    k.loader_first(ld, end)
    return k

def k6(NS=5, pA=3, pL=6, pB=8):
    S1, S2 = KA1 // 64, KC2 // 64
    g = G(128, NS, 112, 'std')
    k = Kern('k6_ff2_kernel', 256, 512, g.NS*g.SB, 232 if not common.STAMPS else 256)
    a = k.a
    end = a.lab('end'); ld = a.lab('loader')
    a(f's_cmp_ge_u32 s2, 256\ns_cbranch_scc1 {end}')
    waveid(a); stamp(a, 5, 0)
    ldptr(a, 6, 'ws'); ldptr(a, 8, 'out')
    if common.K6MAP:
        a('s_and_b32 s14, s2, 7\ns_lshr_b32 s15, s2, 3\ns_lshr_b32 s10, s14, 2')
        a('s_and_b32 s12, s14, 1\ns_lshl_b32 s12, s12, 3\ns_and_b32 s3, s15, 7\ns_add_u32 s12, s12, s3')
        a('s_and_b32 s11, s14, 2\ns_lshl_b32 s11, s11, 1\ns_lshr_b32 s3, s15, 3\ns_add_u32 s11, s11, s3\ns_lshl_b32 s13, s11, 1\ns_add_u32 s13, s13, s10')
    else:
        a('s_and_b32 s14, s2, 7\ns_lshr_b32 s15, s2, 3\ns_and_b32 s10, s15, 1')
        a('s_lshr_b32 s12, s14, 1\ns_lshl_b32 s12, s12, 2\ns_lshr_b32 s3, s15, 1\ns_and_b32 s3, s3, 3\ns_add_u32 s12, s12, s3')
        a('s_and_b32 s11, s14, 1\ns_lshl_b32 s11, s11, 2\ns_lshr_b32 s3, s15, 3\ns_add_u32 s11, s11, s3\ns_lshl_b32 s13, s11, 1\ns_add_u32 s13, s13, s10')
    PX = 4 if common.K6MAP else 8
    a('v_and_b32 v2, 63, v0')
    a(f's_cmp_ge_u32 s95, 4\ns_cbranch_scc1 {ld}')
    VB, ACC, P, Q, XR, GB, RX = 10, 16, 80, 112, 144, 160, 192
    g.consumer_setup(a, VB, j0mul=2)
    a('s_lshl_b32 s46, s13, 1\ns_add_u32 s46, s46, s39')
    a('s_lshl_b32 s47, s12, 3\ns_lshl_b32 s3, s38, 2\ns_add_u32 s47, s47, s3')
    a('v_lshlrev_b32 v5, 4, v2\nv_lshlrev_b32 v6, 4, v4\nv_lshlrev_b32 v14, 9, v4\nv_mov_b32 v15, 0\nv_mov_b32 v9, 1')
    for j in range(64): a(f'v_mov_b32 v{ACC+j}, 0')
    a('v_lshlrev_b32 v13, 11, v3\nv_and_b32 v7, 1, v4\nv_lshl_add_u32 v13, v7, 5, v13\nv_lshrrev_b32 v7, 1, v4\nv_lshl_add_u32 v13, v7, 4, v13')
    a('s_lshl_b32 s48, s47, 15\ns_lshl_b32 s3, s46, 6\ns_add_u32 s48, s48, s3')
    a(f's_lshl_b32 s52, s2, 14\ns_lshl_b32 s3, s95, 12\ns_add_u32 s52, s52, s3\ns_xor_b32 s53, s52, {PX << 14}')
    a(f's_lshl_b32 s54, s2, 7\ns_xor_b32 s55, s54, {PX << 7}')
    a('s_waitcnt lgkmcnt(0)')
    srd_ws(a, 16, 6, 'X1'); srd_ws(a, 20, 6, 'MODP'); srd_in(a, 24, 8, 'out'); srd_ws(a, 28, 6, 'XCH'); srd_ws(a, 32, 6, 'FLAG')
    stamp(a, 15, 0)
    a('s_barrier')
    stamp(a, 10, 0); stamp(a, 21, 0, cyc=True)
    rP, rQ = g.reads(VB, P, 0, 4, 4, 512), g.reads(VB, Q, 1, 4, 4, 512)
    rP2, rQ2 = g.reads(VB, P, 0, 2, 2), g.reads(VB, Q, 1, 2, 2)
    mP2, mQ2 = g.mfmas(ACC, P, 2, 4), g.mfmas(ACC, Q, 2, 4)
    for x in rP: a(x)
    a('s_lshl_b32 s50, s47, 5\ns_add_u32 s50, s50, s46\ns_lshl_b32 s50, s50, 10')
    for mt in range(4):
        a(f'buffer_load_dwordx4 v[{XR+4*mt}:{XR+4*mt+3}], v5, s[16:19], s50 offen')
        if mt < 3: a('s_add_u32 s50, s50, 32768')
    a('s_lshl_b32 s49, s46, 7')
    ld_mod8(a, GB, 20, 6, 5, 49)
    mP, mQ = g.mfmas(ACC, P, 4, 4), g.mfmas(ACC, Q, 4, 4)
    XU = 168
    xu = lambda mt: XU + 8*mt if mt < 3 else 224
    b = Asm(); fin_mod8(b, GB, False)
    for mt in range(4):
        for j in range(4): unpk(b, xu(mt)+2*j, xu(mt)+2*j+1, XR+4*mt+j)
    prep = b.lines; h = len(prep) // 4
    g.loop(a, 8, mP, mQ, rP, rQ, VB, last_reads=rP)
    g.loop(a, 1, mP, mQ, rP, rQ, VB, last_reads=rP, xP=['s_waitcnt vmcnt(0)'] + prep[:h], xQ=prep[h:2*h])
    g.loop(a, 1, mP, mQ, rP, rQ, VB, last_reads=rP, xP=prep[2*h:3*h], xQ=prep[3*h:])
    g.loop(a, S1 - 10, mP, mQ, rP, rQ, VB,
           last_pre=[f'v_sub_u32 v{VB}, v{VB}, v14', f'v_sub_u32 v{VB+1}, v{VB+1}, v14'], last_reads=rP2)
    stamp(a, 16, 0); stamp(a, 21, 1, cyc=True)
    cv = lambda mt: [f'v_cvt_pk_bf16_f32 v{RX+4*mt+j}, v{ACC+16*mt+8+2*j}, v{ACC+16*mt+9+2*j}' for j in range(4)]
    sd = lambda mt: [f'buffer_store_dwordx4 v[{RX+4*mt}:{RX+4*mt+3}], v5, s[28:31], s52 offen offset:{mt*1024} sc1']
    g.loop(a, 1, mP2, mQ2, rP2, rQ2, VB, last_reads=rP2, xP=['s_nop 0'] + cv(0) + sd(0) + cv(1) + sd(1), xQ=cv(2) + sd(2) + cv(3) + sd(3))
    g.loop(a, pA - 1, mP2, mQ2, rP2, rQ2, VB, last_pre=['s_waitcnt vmcnt(0)'], last_reads=rP2)
    nf = a.lab('nf')
    a(f's_cmp_lg_u32 s95, 0\ns_cbranch_scc1 {nf}\ns_mov_b64 exec, 1\nbuffer_store_dword v9, v15, s[32:35], s54 offen sc1\ns_mov_b64 exec, -1\n{nf}:')
    g.loop(a, pL - pA, mP2, mQ2, rP2, rQ2, VB, last_reads=rP2)
    a('buffer_load_dword v7, v15, s[32:35], s55 offen sc1')
    g.loop(a, pB - pL, mP2, mQ2, rP2, rQ2, VB, last_reads=rP2)
    pl = a.lab('poll'); ok = a.lab('ok')
    a(f's_mov_b32 s56, 0x400000\n{pl}:\ns_waitcnt vmcnt(0)\nv_readfirstlane_b32 s3, v7\ns_cmp_eq_u32 s3, 1\ns_cbranch_scc1 {ok}')
    a(f'buffer_load_dword v7, v15, s[32:35], s55 offen sc1\ns_sub_u32 s56, s56, 1\ns_cbranch_scc0 {pl}\n{ok}:')
    for i in range(4): a(f'buffer_load_dwordx4 v[{RX+4*i}:{RX+4*i+3}], v5, s[28:31], s53 offen offset:{i*1024} sc1')
    stamp(a, 16, 1)
    if S2 - pB > 1: g.loop(a, S2 - pB - 1, mP2, mQ2, rP2, rQ2, VB, last_reads=rP2)
    T = RX + 16
    def mix(mt):
        b = Asm(); U = xu(mt); t = T + 8*(mt & 1)
        for j in range(4): unpk(b, t+2*j, t+2*j+1, RX+4*mt+j)
        for j in range(8): b(f'v_fmac_f32 v{U+j}, v{GB+j}, v{t+j}')
        return b.lines
    g.loop(a, 1, mP2, mQ2, rP2, rQ2, VB, xP=['s_waitcnt vmcnt(0)'] + mix(0) + mix(1), xQ=mix(2) + mix(3))
    stamp(a, 10, 1)
    for mt in range(4):
        U = xu(mt); PK = 96 + 4*mt
        for j in range(0, 8, 2): a(f'v_pk_fma_f32 v[{U+j}:{U+j+1}], v[{GB+j}:{GB+j+1}], v[{ACC+16*mt+j}:{ACC+16*mt+j+1}], v[{U+j}:{U+j+1}]')
        for j in range(4): a(f'v_cvt_pk_bf16_f32 v{PK+j}, v{U+2*j}, v{U+2*j+1}')
        a(f'v_permlane16_swap_b32 v{PK}, v{PK+2}\nv_permlane16_swap_b32 v{PK+1}, v{PK+3}')
        a(f'buffer_store_dwordx4 v[{PK}:{PK+3}], v13, s[24:27], s48 offen')
        if mt < 3: a('s_add_u32 s48, s48, 32768')
    stamp(a, 5, 1)
    a('s_endpgm')
    a(f'{ld}:')
    H1 = S1 // 2; T2 = S2 // 4
    if common.K6MAP:
        assert H1 + T2 == 14
        a(f's_lshr_b32 s51, s14, 1\ns_mul_i32 s37, s12, {8*112*1024}\ns_mul_i32 s3, s51, {14*2048}\ns_add_u32 s37, s37, s3')
    else:
        a(f's_mul_i32 s37, s12, {8*112*1024}\ns_mul_i32 s3, s10, {S1*2048}\ns_add_u32 s37, s37, s3')
    g.loader_setup(a, 37)
    a(f's_lshl_b32 s44, s42, 12\ns_mul_i32 s36, s13, {S1*16384}\ns_add_u32 s36, s36, s44')
    a(f's_lshl_b32 s49, s42, 11\ns_mul_i32 s48, s13, {S2*8192}\ns_add_u32 s48, s48, s49\ns_add_u32 s48, s48, {16*S1*16384}')
    if common.K6MAP:
        a(f's_and_b32 s3, s51, 1\ns_mul_i32 s52, s3, {H1*16384}\ns_add_u32 s36, s36, s52\ns_mul_i32 s52, s3, {-S1*16384 & 0xffffffff:#x}')
        a(f's_mul_i32 s53, s3, {-28*2048 & 0xffffffff:#x}\ns_add_u32 s53, s53, {(14-H1)*2048}')
        a(f's_xor_b32 s50, s51, 1\ns_mul_i32 s50, s50, {-14*2048 & 0xffffffff:#x}')
    else:
        a(f's_xor_b32 s50, s10, 1\ns_mul_i32 s50, s50, {S1*2048}')
    a('s_waitcnt lgkmcnt(0)')
    srd_ws(a, 16, 6, 'W2T'); srd_ws(a, 20, 6, 'F')
    i1 = g.issue_fn(a, 16, 20, 36, 44); i2 = g.issue_fn(a, 16, 20, 48, 49, NB=2)
    def first2():
        a('s_add_u32 s46, s46, s50\ns_add_u32 s47, s47, s50'); i2[0]()
    def jump1():
        a('s_add_u32 s46, s46, s53\ns_add_u32 s47, s47, s53\ns_add_u32 s36, s36, s52'); i1[0]()
    def jump2():
        a(f's_add_u32 s46, s46, {H1*2048}\ns_add_u32 s47, s47, {H1*2048}'); i2[0]()
    if common.K6MAP: steps = [i1]*H1 + [(jump1, 8)] + [i1]*(H1-1) + [(first2, 6)] + [i2]*(T2-1) + ([(jump2, 6)] + [i2]*(T2-1))*3
    else: steps = [i1]*S1 + [(first2, 6)] + [i2]*(S2-1)
    loader_loop(a, steps, NS, g.SB, sk=15, trace=0)
    stamp(a, 5, 1)
    a(f'{end}:\ns_endpgm')
    k.loader_first(ld, end)
    return k
```

```python
from common import *
import common

def gemv(a, lchunk, col0, swg, gmap=0):
    stride = 12288
    ldptr(a, 4, 'wmod'); ldptr(a, 6, 'ws'); ldptr(a, 8, 'c')
    if gmap == 0: a(f's_lshr_b32 s10, s{swg}, {lchunk}\ns_and_b32 s11, s{swg}, {(1 << lchunk) - 1}')
    else: a(f's_and_b32 s10, s{swg}, 7\ns_lshr_b32 s11, s{swg}, 3\ns_and_b32 s12, s10, 1\ns_lshl_b32 s12, s12, 4\ns_add_u32 s11, s11, s12\ns_lshr_b32 s10, s10, 1')
    a('v_and_b32 v2, 63, v0\nv_and_b32 v4, 7, v2')
    a('v_and_b32 v5, 0xf8, v0')
    a('s_lshl_b32 s12, s10, 8\nv_add_u32 v5, s12, v5')
    a(f's_mov_b32 s13, {stride}\nv_mul_lo_u32 v6, v5, s13\nv_lshl_add_u32 v6, v4, 4, v6')
    a(f's_lshl_b32 s14, s11, 7\ns_add_u32 s14, s14, {col0*2}')
    a('v_lshlrev_b32 v7, 1, v5')
    a('s_waitcnt lgkmcnt(0)')
    srd_in(a, 20, 8, 'c'); srd_in(a, 16, 4, 'wmod')
    a('buffer_load_dwordx4 v[48:51], v7, s[20:23], 0 offen')
    W = 64
    for i in range(8):
        a(f'buffer_load_dwordx4 v[{W+4*i}:{W+4*i+3}], v6, s[16:19], s14 offen')
        if i < 7: a(f's_add_u32 s14, s14, {stride}')
    S = 16
    srd_ws(a, 24, 6, 'MODP')
    a('v_lshrrev_b32 v10, 3, v0\nv_lshlrev_b32 v10, 8, v10\nv_lshl_add_u32 v10, v4, 5, v10\nv_lshlrev_b32 v11, 2, v2')
    a(f's_mul_i32 s15, s10, {6144*4}\ns_lshl_b32 s14, s11, 8\ns_add_u32 s15, s15, s14\ns_add_u32 s15, s15, {col0*4}')
    a(f's_mov_b32 s14, {f32(-LOG2E)}')
    a('s_waitcnt vmcnt(8)')
    for j in range(4): unpk(a, S+2*j, S+2*j+1, 48+j)
    for j in range(8): a(f'v_mul_f32 v{32+j}, s14, v{S+j}')
    for j in range(8): a(f'v_exp_f32 v{32+j}, v{32+j}')
    for j in range(8): a(f'v_add_f32 v{32+j}, 1.0, v{32+j}')
    for j in range(8): a(f'v_rcp_f32 v{32+j}, v{32+j}')
    for j in range(8): a(f'v_mul_f32 v{S+j}, v{S+j}, v{32+j}')
    for j in range(4): rbf2(a, S+2*j, S+2*j+1, 40+j)
    nsc = a.lab('nsc')
    a(f's_cmp_lg_u32 s11, 0\ns_cbranch_scc1 {nsc}')
    srd_ws(a, 20, 6, 'SC')
    a(f'buffer_store_dwordx4 v[40:43], v7, s[20:23], 0 offen\n{nsc}:')
    ACC = 48
    for i in range(8):
        a(f's_waitcnt vmcnt({7-i})')
        for j in range(4):
            t = 32 + 2*j
            unpk(a, t, t+1, W+4*i+j)
        for j in range(4):
            t = 32 + 2*j; s = S + (i & ~1); sel = i & 1
            if i == 0: a(f'v_pk_mul_f32 v[{ACC+2*j}:{ACC+2*j+1}], v[{t}:{t+1}], v[{s}:{s+1}] op_sel:[0,{sel}] op_sel_hi:[1,{sel}]')
            else: a(f'v_pk_fma_f32 v[{ACC+2*j}:{ACC+2*j+1}], v[{t}:{t+1}], v[{s}:{s+1}], v[{ACC+2*j}:{ACC+2*j+1}] op_sel:[0,{sel},0] op_sel_hi:[1,{sel},1]')
    a(f'ds_write_b128 v10, v[{ACC}:{ACC+3}]\nds_write_b128 v10, v[{ACC+4}:{ACC+7}] offset:16')
    a('s_waitcnt lgkmcnt(0)\ns_barrier')
    done = a.lab('gv_done')
    a(f's_cmp_ge_u32 s95, 1\ns_cbranch_scc1 {done}')
    for i in range(16): a(f'ds_read2st64_b32 v[{64+2*i}:{65+2*i}], v11 offset0:{2*i} offset1:{2*i+1}')
    for i in range(8):
        if i % 2 == 0: a(f's_waitcnt lgkmcnt({12-2*i})')
        a(f'v_pk_add_f32 v[{64+4*i}:{65+4*i}], v[{64+4*i}:{65+4*i}], v[{66+4*i}:{67+4*i}]')
    for n in (4, 2, 1):
        st = 32 // n
        for i in range(n): a(f'v_pk_add_f32 v[{64+st*i}:{65+st*i}], v[{64+st*i}:{65+st*i}], v[{64+st*i+st//2}:{65+st*i+st//2}]')
    a('v_add_f32 v64, v64, v65')
    a(f'buffer_store_dword v64, v11, s[24:27], s15 offen{common.ST}')
    a(f'{done}:')

def k1(gmap=0):
    NG, NS_ = 128, 128
    k = Kern('k1_mod_kernel', NG + NS_, 256, 8192, 128 if not common.STAMPS else 256)
    a = k.a
    end = a.lab('end'); st = a.lab('st')
    a(f's_cmp_ge_u32 s2, {NG+NS_}\ns_cbranch_scc1 {end}')
    waveid(a); stamp(a, 0, 0)
    a(f's_cmp_ge_u32 s2, {NG}\ns_cbranch_scc1 {st}')
    gemv(a, 5, 0, 2, gmap)
    stamp(a, 0, 1)
    a('s_endpgm')
    a(f'{st}:')
    ldptr(a, 4, 'x'); ldptr(a, 6, 'ws'); ldptr(a, 8, 'wq'); ldptr(a, 10, 'wk'); ldptr(a, 12, 'wv')
    a(f's_sub_u32 s30, s2, {NG}')
    a('v_and_b32 v2, 63, v0\nv_lshrrev_b32 v3, 4, v0\nv_and_b32 v4, 15, v0')
    a('v_lshlrev_b32 v5, 11, v3\nv_lshl_add_u32 v5, v4, 4, v5\ns_lshl_b32 s14, s30, 15')
    a('v_lshrrev_b32 v6, 4, v2\nv_lshrrev_b32 v7, 2, v2\nv_and_b32 v7, 3, v7\nv_and_b32 v8, 3, v2')
    a('v_lshlrev_b32 v7, 11, v7\nv_lshl_add_u32 v7, v6, 6, v7\nv_lshl_add_u32 v7, v8, 4, v7\nv_lshlrev_b32 v9, 4, v2')
    a('s_lshr_b32 s15, s30, 4\ns_lshl_b32 s15, s15, 8\ns_and_b32 s3, s30, 15\ns_lshl_b32 s3, s3, 17\ns_add_u32 s15, s15, s3\ns_lshl_b32 s3, s95, 15\ns_add_u32 s15, s15, s3')
    if common.QL: a('s_and_b32 s31, s30, 15\ns_lshl_b32 s31, s31, 3\ns_lshr_b32 s3, s30, 4\ns_add_u32 s31, s31, s3\ns_lshl_b32 s31, s31, 14')
    else: a('s_lshl_b32 s31, s30, 14')
    a('s_lshl_b32 s3, s95, 12\ns_add_u32 s31, s31, s3')
    a('s_waitcnt lgkmcnt(0)')
    srd_in(a, 16, 4, 'x')
    X = 32
    for i in range(8): a(f'buffer_load_dwordx4 v[{X+4*i}:{X+4*i+3}], v5, s[16:19], s14 offen offset:{256*i}')
    srd_in(a, 20, 8, 'wq')
    for i in range(4):
        a(f'buffer_load_dwordx4 v[{16+4*i}:{19+4*i}], v7, s[20:23], s15 offen')
        if i < 3: a('s_add_u32 s15, s15, 8192')
    srd_in(a, 24, 10, 'wk')
    a('v_lshlrev_b32 v10, 1, v0\ns_lshl_b32 s3, s30, 9\nbuffer_load_ushort v12, v10, s[24:27], s3 offen')
    srd_in(a, 24, 12, 'wv')
    a('buffer_load_ushort v12, v10, s[24:27], s3 offen')
    srd_ws(a, 24, 6, 'FLAG')
    a('v_mov_b32 v13, 0\ns_lshl_b32 s3, s30, 8\nv_and_b32 v11, 0xfc, v0')
    a('buffer_store_dword v13, v11, s[24:27], s3 offen')
    srd_ws(a, 24, 6, 'WQT'); srd_ws(a, 36, 6, 'ST1')
    U = 64
    for i in range(8):
        a(f's_waitcnt vmcnt({14-i})')
        for j in range(4): unpk(a, U+8*i+2*j, U+8*i+2*j+1, X+4*i+j)
        for j in range(0, 4, 2):
            if i == 0: a(f'v_pk_add_f32 v[{32+j}:{33+j}], v[{U+2*j}:{U+2*j+1}], v[{U+2*j+2}:{U+2*j+3}]')
            else: a(f'v_pk_add_f32 v[{32+j}:{33+j}], v[{32+j}:{33+j}], v[{U+8*i+2*j}:{U+8*i+2*j+1}]\nv_pk_add_f32 v[{32+j}:{33+j}], v[{32+j}:{33+j}], v[{U+8*i+2*j+2}:{U+8*i+2*j+3}]')
    a('s_waitcnt vmcnt(3)')
    for i in range(4): a(f'buffer_store_dwordx4 v[{16+4*i}:{19+4*i}], v9, s[24:27], s31 offen offset:{1024*i}{common.ST}')
    def red16():
        a('v_pk_add_f32 v[32:33], v[32:33], v[34:35]\nv_add_f32 v32, v32, v33')
        for r in (8, 4, 2, 1): a(f'v_add_f32_dpp v32, v32, v32 row_ror:{r} row_mask:0xf bank_mask:0xf')
    red16()
    a(f'v_mul_f32 v36, {f32(-1/1024)}, v32')
    for j in range(32): a(f'v_pk_add_f32 v[{U+2*j}:{U+2*j+1}], v[{U+2*j}:{U+2*j+1}], v[36:37] op_sel_hi:[1,0]')
    for j in range(32):
        c = 32 + 2*(j & 1)
        if j < 2: a(f'v_pk_mul_f32 v[{c}:{c+1}], v[{U+2*j}:{U+2*j+1}], v[{U+2*j}:{U+2*j+1}]')
        else: a(f'v_pk_fma_f32 v[{c}:{c+1}], v[{U+2*j}:{U+2*j+1}], v[{U+2*j}:{U+2*j+1}], v[{c}:{c+1}]')
    red16()
    a(f'v_mov_b32 v33, {f32(1e-5)}\nv_fmac_f32 v33, {f32(1/1024)}, v32\nv_rsq_f32 v32, v33\nv_lshlrev_b32 v3, 3, v3\ns_lshl_b32 s3, s30, 7\nv_mul_f32 v33, v36, v32')
    a(f'buffer_store_dwordx2 v[32:33], v3, s[36:39], s3 offen{common.ST}')
    stamp(a, 0, 1)
    a(f'{end}:\ns_endpgm')
    return k

def allreduce_g(a, v, t, op='v_add_f32'):
    a(f'v_mov_b32 v{t}, v{v}\nv_permlane16_swap_b32 v{t}, v{v}\n{op} v{v}, v{v}, v{t}')
    a(f'v_mov_b32 v{t}, v{v}\nv_permlane32_swap_b32 v{t}, v{v}\n{op} v{v}, v{v}, v{t}')

def k2(dbg=''):
    NUT = 0
    LG, LS, LW = 0, 4096, 8192
    k = Kern('k2_lnkv_kernel', 256 + NUT, 256, LW + 65536, 192 if not common.STAMPS else 256)
    a = k.a
    end = a.lab('end'); ut = a.lab('ut')
    a(f's_cmp_ge_u32 s2, {256+NUT}\ns_cbranch_scc1 {end}')
    waveid(a); stamp(a, 1, 0)
    ldptr(a, 4, 'x'); ldptr(a, 6, 'ws'); ldptr(a, 8, 'wk'); ldptr(a, 10, 'wv')
    a('s_and_b32 s12, s2, 7\ns_lshr_b32 s13, s2, 4\ns_lshl_b32 s13, s13, 3\ns_add_u32 s12, s12, s13')
    a('s_lshr_b32 s13, s2, 3\ns_and_b32 s13, s13, 1')
    a('v_and_b32 v2, 63, v0\nv_and_b32 v3, 15, v2\nv_lshrrev_b32 v4, 4, v2')
    a('v_lshlrev_b32 v5, 11, v3\nv_lshl_add_u32 v5, v4, 4, v5')
    a('s_lshl_b32 s14, s12, 15\ns_lshl_b32 s15, s95, 9\ns_add_u32 s14, s14, s15')
    a('v_lshrrev_b32 v6, 2, v2\nv_lshrrev_b32 v7, 5, v2\nv_lshlrev_b32 v7, 1, v7\nv_and_b32 v8, 3, v2\nv_xor_b32 v7, v8, v7')
    a('v_lshlrev_b32 v6, 6, v6\nv_lshl_add_u32 v6, v7, 4, v6\nv_lshlrev_b32 v9, 4, v0\nv_lshlrev_b32 v11, 3, v3')
    a('s_waitcnt lgkmcnt(0)')
    srd_ws(a, 20, 6, 'MODP')
    MP = 96
    for i in range(8):
        mi, p = i >> 2, i & 3
        if 'nomp' in dbg and p: continue
        a(f's_mov_b32 s15, {(p*6144 + mi*1024)*4}\nbuffer_load_dwordx4 v[{MP+4*i}:{MP+4*i+3}], v9, s[20:23], s15 offen')
    stamp(a, 20, 0)
    srd_in(a, 16, 4, 'x')
    X = 64
    for s in range(8): a(f'buffer_load_dwordx4 v[{X+4*s}:{X+4*s+3}], v5, s[16:19], s14 offen offset:{64*s}')
    stamp(a, 20, 1)
    srd_ws(a, 20, 6, 'ST1')
    a('s_lshl_b32 s15, s12, 7\nbuffer_load_dwordx2 v[20:21], v11, s[20:23], s15 offen')
    a('s_cmp_eq_u32 s13, 0\ns_cselect_b32 s8, s8, s10\ns_cselect_b32 s9, s9, s11')
    srd_in(a, 24, 8, 'wk')
    a('s_lshl_b32 s15, s95, 14')
    for i in range(16):
        if i % 4 == 0: a(f's_add_u32 m0, s15, {LW}')
        if 'now' not in dbg: a(f'buffer_load_dwordx4 v6, s[24:27], s15 offen offset:{(i%4)*1024} lds')
        if i % 4 == 3 and i < 15: a('s_add_u32 s15, s15, 4096')
    srd_ws(a, 28, 6, 'H'); srd_ws(a, 32, 6, 'KV')
    a(f's_lshl_b32 s15, s95, 10\nv_lshlrev_b32 v13, 5, v4\nv_add_u32 v13, s15, v13')
    a('v_lshrrev_b32 v14, 2, v2\nv_and_b32 v14, 3, v14\nv_lshl_add_u32 v14, v4, 3, v14\nv_lshlrev_b32 v14, 6, v14')
    a('v_lshl_add_u32 v14, v8, 3, v14\nv_and_b32 v15, 1, v4\nv_lshl_add_u32 v14, v15, 5, v14')
    a(f's_lshl_b32 s15, s95, 14\ns_add_u32 s15, s15, {LW}\nv_add_u32 v14, s15, v14\nv_xor_b32 v15, 32, v14')
    a('v_lshrrev_b32 v16, 1, v4\nv_lshlrev_b32 v16, 10, v16\nv_and_b32 v17, 1, v4\nv_lshl_add_u32 v16, v17, 9, v16\nv_lshl_add_u32 v16, v3, 4, v16')
    a('s_lshr_b32 s14, s12, 1\ns_lshl_b32 s14, s14, 16\ns_and_b32 s15, s12, 1\ns_lshl_b32 s15, s15, 8\ns_add_u32 s14, s14, s15')
    a('s_lshl_b32 s15, s95, 14\ns_add_u32 s14, s14, s15\ns_lshl_b32 s15, s13, 13\ns_add_u32 s14, s14, s15')
    stamp(a, 17, 0)
    a('s_waitcnt vmcnt(25)' if not common.STAMPS else 's_waitcnt vmcnt(28)')
    stamp(a, 17, 1)
    for m_ in range(2):
        b = MP + 16*m_
        for j in (0, 2): a(f'v_pk_add_f32 v[{b+j}:{b+j+1}], v[{b+j}:{b+j+1}], v[{b+4+j}:{b+5+j}]\nv_pk_add_f32 v[{b+8+j}:{b+9+j}], v[{b+8+j}:{b+9+j}], v[{b+12+j}:{b+13+j}]')
        for j in (0, 2): a(f'v_pk_add_f32 v[{b+j}:{b+j+1}], v[{b+j}:{b+j+1}], v[{b+8+j}:{b+9+j}]')
        for j in (0, 2): rbf2(a, b+j, b+j+1, 10)
    b = MP + 16
    for j in range(4): a(f'v_add_f32 v{b+j}, 1.0, v{b+j}')
    for j in (0, 2): rbf2(a, b+j, b+j+1, 10)
    a(f'ds_write_b128 v9, v[{MP}:{MP+3}] offset:{LS}\nds_write_b128 v9, v[{b}:{b+3}] offset:{LG}')
    U = 96
    GS = 160
    def rd_gs(s):
        b = GS + 16*(s % 2)
        a(f'ds_read_b128 v[{b}:{b+3}], v13 offset:{LG+128*s}\nds_read_b128 v[{b+4}:{b+7}], v13 offset:{LG+128*s+16}')
        a(f'ds_read_b128 v[{b+8}:{b+11}], v13 offset:{LS+128*s}\nds_read_b128 v[{b+12}:{b+15}], v13 offset:{LS+128*s+16}')
    rd_gs(0)
    a('s_waitcnt vmcnt(16)' if not common.STAMPS else 's_waitcnt vmcnt(18)')
    stamp(a, 18, 0)
    for s in range(8):
        if s < 7: rd_gs(s+1)
        u = U + 8*(s % 2)
        for j in range(4): unpk(a, u+2*j, u+2*j+1, X+4*s+j)
        for j in range(4): a(f'v_pk_fma_f32 v[{u+2*j}:{u+2*j+1}], v[{u+2*j}:{u+2*j+1}], v[20:21], v[20:21] op_sel:[0,0,1] op_sel_hi:[1,0,1]')
        a(f's_waitcnt lgkmcnt({4 if s < 7 else 0})')
        b = GS + 16*(s % 2)
        for j in range(4): a(f'v_pk_fma_f32 v[{u+2*j}:{u+2*j+1}], v[{u+2*j}:{u+2*j+1}], v[{b+2*j}:{b+2*j+1}], v[{b+8+2*j}:{b+9+2*j}]')
        for j in range(4): a(f'v_cvt_pk_bf16_f32 v{X+4*s+j}, v{u+2*j}, v{u+2*j+1}')
    stamp(a, 18, 1)
    a('s_waitcnt vmcnt(0)')
    stamp(a, 19, 0)
    for s in range(8):
        for ft in range(2):
            d = U + 8*s + 4*ft
            a(f'ds_read_b64_tr_b16 v[{d}:{d+1}], v{14+ft} offset:{s*2048}\nds_read_b64_tr_b16 v[{d+2}:{d+3}], v{14+ft} offset:{s*2048+256}')
    vlab = a.lab('vpath'); join = a.lab('join')
    a(f's_cmp_eq_u32 s13, 1\ns_cbranch_scc1 {vlab}')
    for half in range(2):
        if half == 1: a(f's_branch {join}\n{vlab}:')
        for s in range(4):
            ss = s + 4*half
            if s == 2: a('s_add_u32 s14, s14, 4096')
            a(f'buffer_store_dwordx4 v[{X+4*ss}:{X+4*ss+3}], v16, s[28:31], s14 offen offset:{(s%2)*2048}{common.ST}')
        for s in range(8):
            if s % 2 == 0: a(f's_waitcnt lgkmcnt({min(15, 32 - 4*(s+2))})')
            for ft in range(2):
                d = U + 8*s + 4*ft; c = f'v[{24+4*ft}:{27+4*ft}]' if s else '0'
                A, B = (f'v[{d}:{d+3}]', f'v[{X+4*s}:{X+4*s+3}]')
                if half: A, B = B, A
                a(f'v_mfma_f32_16x16x32_bf16 v[{24+4*ft}:{27+4*ft}], {A}, {B}, {c}')
    a(f'{join}:')
    stamp(a, 19, 1)
    a(f'v_lshlrev_b32 v17, 4, v2\ns_lshl_b32 s15, s95, 14\nv_add_u32 v18, s15, v17')
    a('v_and_b32 v19, 1, v4\nv_lshrrev_b32 v20, 1, v4')
    a('s_cmp_eq_u32 s13, 0\ns_cselect_b64 vcc, -1, 0')
    a('v_cndmask_b32 v21, v20, v19, vcc\nv_cndmask_b32 v22, v19, v20, vcc')
    a('v_lshlrev_b32 v21, 9, v21\nv_lshl_add_u32 v21, v22, 3, v21\nv_lshl_add_u32 v21, v3, 4, v21')
    a(f'ds_write_b128 v18, v[24:27] offset:{LW}\nds_write_b128 v18, v[28:31] offset:{LW+1024}')
    a('s_and_b32 s15, s12, 1\ns_cmp_eq_u32 s13, 0\ns_cselect_b32 s36, s95, s15\ns_cselect_b32 s37, s15, s95')
    a('s_lshl_b32 s36, s36, 10\ns_lshl_b32 s37, s37, 8\ns_add_u32 s36, s36, s37\ns_lshl_b32 s37, s13, 11\ns_add_u32 s36, s36, s37')
    a('s_lshr_b32 s37, s12, 1\ns_lshl_b32 s37, s37, 12\ns_add_u32 s36, s36, s37')
    a('s_lshl_b32 s15, s95, 10\nv_add_u32 v18, s15, v17')
    a('s_waitcnt lgkmcnt(0)\ns_barrier')
    fin = a.lab('fin')
    a(f's_cmp_ge_u32 s95, 2\ns_cbranch_scc1 {fin}')
    for w in range(4): a(f'ds_read_b128 v[{32+4*w}:{35+4*w}], v18 offset:{LW+16384*w}')
    a('s_waitcnt lgkmcnt(0)')
    for j in (0, 2): a(f'v_pk_add_f32 v[{32+j}:{33+j}], v[{32+j}:{33+j}], v[{36+j}:{37+j}]\nv_pk_add_f32 v[{40+j}:{41+j}], v[{40+j}:{41+j}], v[{44+j}:{45+j}]')
    for j in (0, 2): a(f'v_pk_add_f32 v[{32+j}:{33+j}], v[{32+j}:{33+j}], v[{40+j}:{41+j}]')
    a('v_cvt_pk_bf16_f32 v32, v32, v33\nv_cvt_pk_bf16_f32 v33, v34, v35')
    a(f'buffer_store_dwordx2 v[32:33], v21, s[32:35], s36 offen{common.ST}')
    a(f'{fin}:')
    stamp(a, 1, 1)
    a(f'{end}:\ns_endpgm')
    return k
```

```python
from common import *
import common
from gemm import lin_copy

OFF = 60.0
def k3(NSQ=4, order=(0,1,2,4,3,5), pf_delay=1, prio=1, rdpos=(0,1,2,3), waitpos=5, waitpos2=1, barpos=4, rst=' sc1', hprio=2):
    QB = 65536; SBQ = 24576
    k = Kern('k3_attn_kernel', 256, 512, QB + NSQ*SBQ, 208 if not common.STAMPS else 256)
    a = k.a
    end = a.lab('end'); ld = a.lab('loader')
    a(f's_cmp_ge_u32 s2, 256\ns_cbranch_scc1 {end}')
    waveid(a); stamp(a, 2, 0)
    ldptr(a, 6, 'ws')
    a('s_and_b32 s14, s2, 7\ns_lshr_b32 s15, s2, 3')
    a('s_lshr_b32 s12, s14, 1\ns_lshl_b32 s12, s12, 3\ns_and_b32 s3, s15, 7\ns_add_u32 s12, s12, s3')
    a('s_and_b32 s13, s14, 1\ns_lshl_b32 s13, s13, 2\ns_lshr_b32 s3, s15, 3\ns_add_u32 s13, s13, s3')
    a('v_and_b32 v2, 63, v0')
    a(f's_cmp_ge_u32 s95, 4\ns_cbranch_scc1 {ld}')
    S = [16, 32, 48, 64]; O = [80, 96]; NM = [112, 128]; Qr = [144, 152]; Kb = [160, 168]; Vb = [176, 184]; Lr = [192, 196]; ONE = 200
    IDX = 12
    if prio: a(f's_setprio {prio}')
    a('v_lshrrev_b32 v3, 5, v2\nv_lshlrev_b32 v3, 11, v3\nv_lshrrev_b32 v4, 2, v2\nv_and_b32 v4, 3, v4\nv_lshl_add_u32 v3, v4, 6, v3')
    a('v_lshrrev_b32 v4, 4, v2\nv_and_b32 v4, 1, v4\nv_lshl_add_u32 v3, v4, 5, v3\nv_and_b32 v5, 3, v2\nv_lshl_add_u32 v3, v5, 3, v3')
    a(f's_lshl_b32 s3, s95, 8\ns_add_u32 s3, s3, {QB}\nv_add_u32 v10, s3, v3')
    a(f'v_lshlrev_b32 v9, 4, v2\nv_add_u32 v11, {QB+16384}, v9')
    a('v_lshlrev_b32 v13, 15, v4\nv_lshrrev_b32 v5, 5, v2\nv_lshl_add_u32 v13, v5, 8, v13\nv_and_b32 v5, 15, v2\nv_lshl_add_u32 v13, v5, 4, v13')
    a('s_lshl_b32 s46, s12, 7\ns_lshl_b32 s3, s13, 2\ns_add_u32 s46, s46, s3\ns_add_u32 s46, s46, s95\ns_lshl_b32 s46, s46, 10')
    a(f'v_and_b32 v5, 7, v2\nv_mov_b32 v6, 0x3f803f80\nv_cmp_eq_u32 vcc, 0, v5\nv_cndmask_b32 v{ONE}, 0, v6, vcc\nv_cndmask_b32 v{ONE+1}, 0, v6, vcc')
    a(f'v_cmp_eq_u32 vcc, 4, v5\nv_cndmask_b32 v{ONE+2}, 0, v6, vcc\nv_cndmask_b32 v{ONE+3}, 0, v6, vcc')
    a(f'v_mov_b32 v{IDX}, 0xdddddddd')
    ACC = [16, 32]; P = 48; Q = 160
    for j in range(32): a(f'v_mov_b32 v{16+j}, 0')
    for j in range(32): a(f'v_mov_b32 v{O[0]+j}, 0')
    for j in range(8): a(f'v_mov_b32 v{Lr[0]+j}, 0\nv_mov_b32 v{Vb[1]+j}, 0')
    a('s_waitcnt lgkmcnt(0)')
    srd_ws(a, 24, 6, 'O'); srd_ws(a, 28, 6, 'KV')
    def reads(R, sub):
        out = []
        for i in range(2):
            ks = 2*sub + i; b = R + 12*i
            out += [f'ds_read_b64_tr_b16 v[{b}:{b+1}], v10 offset:{ks*4096}', f'ds_read_b64_tr_b16 v[{b+2}:{b+3}], v10 offset:{ks*4096+1024}',
                    f'ds_read_b128 v[{b+4}:{b+7}], v11 offset:{ks*1024}', f'ds_read_b128 v[{b+8}:{b+11}], v11 offset:{4096+ks*1024}']
        return out
    def mf(R):
        return [f'v_mfma_f32_32x32x16_bf16 v[{ACC[j]}:{ACC[j]+15}], v[{R+12*i}:{R+12*i+3}], v[{R+12*i+4+4*j}:{R+12*i+7+4*j}], v[{ACC[j]}:{ACC[j]+15}]' for i in range(2) for j in range(2)]
    def inter(m, r, extra=()):
        r = list(r) + list(extra); per = -(-len(r) // len(m))
        for x in m:
            a(x)
            for _ in range(per):
                if r: a(r.pop(0))
    L = a.lab('ql'); T = a.lab('qt')
    a(f's_mov_b32 s40, 0\ns_mov_b32 s41, 16\ns_mov_b32 s43, {SBQ}')
    a('s_barrier')
    stamp(a, 11, 0)
    for x in reads(P, 0): a(x)
    a(f'{L}:')
    a('s_waitcnt lgkmcnt(0)')
    adv = [f's_add_u32 s40, s40, {SBQ}', f's_cmp_eq_u32 s40, {NSQ*SBQ}', f's_cselect_b32 s42, {-(NSQ-1)*SBQ & 0xffffffff:#x}, s43', 's_cselect_b32 s40, 0, s40',
           'v_add_u32 v10, s42, v10', 'v_add_u32 v11, s42, v11', 's_sub_u32 s41, s41, 1', 's_cmp_eq_u32 s41, 0']
    inter(mf(P), reads(Q, 1), adv)
    a(f's_waitcnt lgkmcnt(0)\ns_cbranch_scc1 {T}\ns_barrier')
    inter(mf(Q), reads(P, 0))
    a(f's_branch {L}\n{T}:')
    for x in mf(Q): a(x)
    stamp(a, 6, 0)
    for j in range(16): a(f'v_mov_b32 v{S[3]+j}, 0')
    a(f's_mov_b32 s44, {f32(LOG2E / 32**0.5)}')
    a('v_mov_b32 v10, v9\nv_add_u32 v11, 16384, v9\ns_mov_b32 s40, 16384')
    for q in range(2):
        for j in range(16): a(f'v_mul_f32 v{ACC[q]+j}, s44, v{ACC[q]+j}')
        for j in range(8): a(f'v_cvt_pk_bf16_f32 v{Qr[q]+j}, v{ACC[q]+2*j}, v{ACC[q]+2*j+1}')
    a('s_barrier')
    a(f'ds_read_b128 v[{Kb[0]}:{Kb[0]+3}], v10\nds_read_b128 v[{Kb[0]+4}:{Kb[0]+7}], v10 offset:1024')
    def qk(D, kb, q, C):
        return [f'v_mfma_f32_32x32x16_bf16 v[{D}:{D+15}], v[{kb}:{kb+3}], v[{Qr[q]}:{Qr[q]+3}], {C}',
                f'v_mfma_f32_32x32x16_bf16 v[{D}:{D+15}], v[{kb+4}:{kb+7}], v[{Qr[q]+4}:{Qr[q]+7}], v[{D}:{D+15}]']
    def pv(Z, vb, q):
        return [f'v_smfmac_f32_32x32x32_bf16 v[{O[q]}:{O[q]+15}], v[{vb}:{vb+3}], v[{Z}:{Z+7}], v{IDX}',
                f'v_smfmac_f32_32x32x32_bf16 v[{O[q]}:{O[q]+15}], v[{vb+4}:{vb+7}], v[{Z+8}:{Z+15}], v{IDX}',
                f'v_smfmac_f32_16x16x64_bf16 v[{Lr[q]}:{Lr[q]+3}], v[{ONE}:{ONE+3}], v[{Z}:{Z+7}], v{IDX}',
                f'v_smfmac_f32_16x16x64_bf16 v[{Lr[q]}:{Lr[q]+3}], v[{ONE}:{ONE+3}], v[{Z+8}:{Z+15}], v{IDX}']
    def max16(d, X, init):
        if init: a(f'v_max3_f32 v{d}, v{X}, v{X+1}, v{X+2}\nv_max_f32 v{d}, v{d}, v{X+15}'); r = range(3, 15, 2)
        else: r = range(0, 16, 2)
        for j in r: a(f'v_max3_f32 v{d}, v{d}, v{X+j}, v{X+j+1}')
    def setneg(off):
        for q in range(2):
            a(f'v_mov_b32 v5, v{3+q}\nv_permlane32_swap_b32 v5, v{3+q}\nv_max_f32 v5, v5, v{3+q}\nv_sub_f32 v{NM[q]}, {f32(-off)}, v5')
            for j in range(1, 16): a(f'v_mov_b32 v{NM[q]+j}, v{NM[q]}')
    a('s_waitcnt lgkmcnt(0)')
    for x in qk(S[1], Kb[0], 0, '0') + qk(S[2], Kb[0], 1, '0'): a(x)
    max16(3, S[1], True); max16(4, S[2], True)
    setneg(OFF)
    for x in qk(S[0], Kb[0], 0, f'v[{NM[0]}:{NM[0]+15}]'): a(x)
    a('s_mov_b32 s41, 16\ns_nop 9')
    stamp(a, 6, 1); stamp(a, 12, 0, cyc=True)
    M = a.lab('main')
    a(f'.p2align 6\n{M}:')
    for t in range(8):
        X, Y, Z = S[t % 4], S[(t+1) % 4], S[(t-1) % 4]
        qn = (t+1) & 1; qp = (t-1) & 1
        m = qk(Y, Kb[((t+1) >> 1) & 1], qn, f'v[{NM[qn]}:{NM[qn]+15}]') + pv(Z, Vb[((t-1) >> 1) & 1], qp)
        m = [m[i] for i in order]
        post = [[] for _ in range(6)]
        if t % 2 == 0:
            j = t//2; b = Vb[j & 1]; off = j*4096 + 2048
            dv = [f'ds_read_b128 v[{b}:{b+3}], v10 offset:{off}', f'ds_read_b128 v[{b+4}:{b+7}], v10 offset:{off+1024}']
            j = t//2 + 1; b = Kb[j & 1]; va, off = (10, j*4096) if j < 4 else (11, 0)
            dk = [f'ds_read_b128 v[{b}:{b+3}], v{va} offset:{off}', f'ds_read_b128 v[{b+4}:{b+7}], v{va} offset:{off+1024}']
            for i, x in zip(rdpos, dk + dv): post[i].append(x)
        else:
            post[waitpos2].append('s_waitcnt lgkmcnt(0)')
        if t % 2 == 0 and waitpos is not None: post[waitpos].append('s_waitcnt lgkmcnt(2)')
        if t == 5: post[barpos].append('s_barrier')
        if t == 7:
            post[0] += ['s_add_u32 s40, s40, 16384', 's_and_b32 s40, s40, 0xffff']
            post[1] += ['s_sub_u32 s41, s41, 1', 's_cmp_lg_u32 s41, 0', 'v_mov_b32 v10, v11', 'v_add_u32 v11, s40, v9']
        e = [f'v_exp_f32 v{X+i}, v{X+i}' for i in range(16)]
        w = [2 if '32x32' in x else 1 for x in m]; tot = sum(w); acc = 0; used = 0
        for i, x in enumerate(m):
            a(x)
            for y in post[i]: a(y)
            acc += w[i]; upto = (16*acc + tot//2)//tot
            for y in e[used:upto]: a(y)
            used = upto
    a(f's_cbranch_scc1 {M}')
    stamp(a, 12, 1, cyc=True); stamp(a, 7, 0)
    for x in pv(S[3], Vb[1], 1): a(x)
    a('s_mov_b32 s47, 0')
    EP = a.lab('epi'); FB = a.lab('fallback'); DONE = a.lab('done')
    a(f'{EP}:')
    a(f'v_rcp_f32 v3, v{Lr[0]}')
    a(f'v_mov_b32 v6, 0\nv_mov_b32 v7, 0\nv_mov_b32 v14, 0\nv_mov_b32 v15, 0\ns_mov_b32 s44, {f32(2.0**100)}')
    for q in range(2):
        if q == 1: a(f'v_rcp_f32 v4, v{Lr[1]}\ns_add_u32 s48, s46, 65536')
        for j in range(0, 16, 2):
            c = 6 if (j & 2) else 14
            a(f'v_pk_fma_f32 v[{c}:{c+1}], v[{O[q]+j}:{O[q]+j+1}], 0, v[{c}:{c+1}]')
        for j in range(16): a(f'v_mul_f32 v{S[q]+j}, v{O[q]+j}, v{3+q}')
        for j in range(8): a(f'v_cvt_pk_bf16_f32 v{S[2]+8*q+j}, v{S[q]+2*j}, v{S[q]+2*j+1}')
        for j in range(2): a(f'buffer_store_dwordx4 v[{S[2]+8*q+4*j}:{S[2]+8*q+4*j+3}], v13, s[24:27], s{46+2*q} offen offset:{512*j}{common.ST}')
    a('v_add_f32 v6, v6, v7\nv_add_f32 v14, v14, v15\nv_cmp_u_f32 s[50:51], v6, v14')
    a(f'v_cmp_nge_f32 s[52:53], s44, v{Lr[0]}\nv_cmp_nge_f32 s[54:55], s44, v{Lr[1]}')
    a('s_or_b64 s[50:51], s[50:51], s[52:53]\ns_or_b64 s[50:51], s[50:51], s[54:55]')
    a(f's_cbranch_scc1 {FB}')
    a(f'{DONE}:')
    stamp(a, 2, 1)
    a('s_endpgm')
    a(f'{FB}:')
    a(f's_cmp_eq_u32 s47, 1\ns_cbranch_scc1 {DONE}\ns_mov_b32 s47, 1\ns_waitcnt vmcnt(0)')
    a('v_mov_b32 v3, 0xff800000\nv_mov_b32 v4, 0xff800000\ns_mov_b32 s40, 0')
    F1 = a.lab('f1'); F2 = a.lab('f2')
    a(f'{F1}:')
    a(f'buffer_load_dwordx4 v[{Kb[0]}:{Kb[0]+3}], v9, s[28:31], s40 offen\nbuffer_load_dwordx4 v[{Kb[0]+4}:{Kb[0]+7}], v9, s[28:31], s40 offen offset:1024')
    a('s_waitcnt vmcnt(0)')
    for x in qk(S[1], Kb[0], 0, '0') + qk(S[2], Kb[0], 1, '0'): a(x)
    max16(3, S[1], False); max16(4, S[2], False)
    a(f's_add_u32 s40, s40, 4096\ns_cmp_lt_u32 s40, 262144\ns_cbranch_scc1 {F1}')
    setneg(11.0)
    for j in range(32): a(f'v_mov_b32 v{O[0]+j}, 0')
    for j in range(8): a(f'v_mov_b32 v{Lr[0]+j}, 0')
    a(f's_mov_b32 s40, 0\n{F2}:')
    for j in range(2):
        a(f'buffer_load_dwordx4 v[{Kb[0]+4*j}:{Kb[0]+4*j+3}], v9, s[28:31], s40 offen offset:{1024*j}')
        a(f'buffer_load_dwordx4 v[{Vb[0]+4*j}:{Vb[0]+4*j+3}], v9, s[28:31], s40 offen offset:{2048+1024*j}')
    a('s_waitcnt vmcnt(0)')
    for q in range(2):
        for x in qk(S[q], Kb[0], q, f'v[{NM[q]}:{NM[q]+15}]'): a(x)
    for q in range(2):
        for i in range(16): a(f'v_exp_f32 v{S[q]+i}, v{S[q]+i}')
    for q in range(2):
        for x in pv(S[q], Vb[0], q): a(x)
    a(f's_add_u32 s40, s40, 4096\ns_cmp_lt_u32 s40, 262144\ns_cbranch_scc1 {F2}')
    a(f's_branch {EP}')
    a(f'{ld}:')
    ldptr(a, 52, 'w1'); ldptr(a, 54, 'w2'); ldptr(a, 56, 'wo'); ldptr(a, 70, 'wmod')
    a('s_sub_u32 s42, s95, 4\nv_lshlrev_b32 v11, 4, v2')
    a(f's_lshl_b32 s44, s42, 12\ns_lshl_b32 s36, s13, {14 if common.QL else 18}\ns_add_u32 s36, s36, s44')
    a('s_lshr_b32 s3, s42, 1\ns_lshl_b32 s37, s12, 1\ns_add_u32 s37, s37, s3\ns_lshl_b32 s37, s37, 16')
    a('s_and_b32 s3, s42, 1\ns_lshl_b32 s3, s3, 11\ns_add_u32 s37, s37, s3')
    a(f's_add_u32 s44, s44, {QB}')
    a(f's_lshl_b32 s45, s42, 11\ns_add_u32 s45, s45, {QB+16384}')
    a('s_waitcnt lgkmcnt(0)')
    srd_ws(a, 16, 6, 'WQT'); srd_ws(a, 20, 6, 'H')
    def issue():
        a('s_add_u32 m0, s40, s45')
        a('buffer_load_dwordx4 v11, s[20:23], s37 offen lds\nbuffer_load_dwordx4 v11, s[20:23], s37 offen offset:1024 lds')
        a('s_add_u32 m0, s40, s44\ns_add_u32 s37, s37, 4096')
        for i in range(4): a(f'buffer_load_dwordx4 v11, s[16:19], s36 offen offset:{1024*i} lds')
        a(f's_add_u32 s36, s36, {131072 if common.QL else 16384}')
    def adv(): a(f's_add_u32 s40, s40, {SBQ}\ns_cmp_eq_u32 s40, {NSQ*SBQ}\ns_cselect_b32 s40, 0, s40')
    def kv():
        for g in range(2):
            a(f's_add_u32 m0, s47, {4096*g}')
            for i in range(4): a(f'buffer_load_dwordx4 v11, s[28:31], s46 offen offset:{1024*i} lds')
            a(f's_add_u32 s46, s46, {4096 if g == 0 else 12288}')
        a('s_add_u32 s47, s47, 16384\ns_and_b32 s47, s47, 0xffff')
    a('s_mov_b32 s40, 0')
    for i in range(NSQ-1): issue(); adv()
    PF = a.lab('pf'); NK = a.lab('nk')
    def qloop(withkv):
        LL = a.lab('ld')
        a(f's_mov_b32 s41, {16-(NSQ-1)}\n{LL}:')
        a(f's_waitcnt vmcnt({6*(NSQ-2)})\ns_barrier')
        issue(); adv()
        if withkv:
            a(f's_cmp_eq_u32 s41, 8\ns_cselect_b32 s3, 4, s41\ns_cmp_lg_u32 s3, 4\ns_cbranch_scc1 {NK}')
            kv()
            a(f'{NK}:')
        a(f's_sub_u32 s41, s41, 1\ns_cmp_lg_u32 s41, 0\ns_cbranch_scc1 {LL}')
        for j in range(NSQ-1): a(f's_waitcnt vmcnt({6*(NSQ-2-j)})\ns_barrier')
    a(f's_cmp_ge_u32 s42, 2\ns_cbranch_scc1 {PF}')
    srd_ws(a, 28, 6, 'KV')
    a('s_lshl_b32 s46, s42, 13\ns_mov_b32 s47, s46')
    qloop(True)
    KL = a.lab('kvl')
    a(f's_mov_b32 s41, 17\n{KL}:')
    a('s_waitcnt vmcnt(8)\ns_barrier')
    kv()
    a(f's_sub_u32 s41, s41, 1\ns_cmp_lg_u32 s41, 0\ns_cbranch_scc1 {KL}')
    a('s_waitcnt vmcnt(0)')
    stamp(a, 2, 1)
    a('s_endpgm')
    a(f'{PF}:')
    S1, S2 = KA1 // 64, KC2 // 64
    a('s_sub_u32 s42, s42, 2')
    a('v_and_b32 v3, 15, v2\nv_lshrrev_b32 v4, 4, v2\nv_lshrrev_b32 v5, 2, v2\nv_and_b32 v5, 3, v5\nv_and_b32 v6, 3, v2\ns_mov_b32 s43, 7168')
    for i in range(7):
        a(f'v_add_u32 v7, {4*i}, v4\nv_mul_u32_u24 v8, 9363, v7\nv_lshrrev_b32 v8, 16, v8')
        a('v_mul_u32_u24 v9, 7, v8\nv_sub_u32 v9, v7, v9\nv_and_b32 v7, 1, v8\nv_lshlrev_b32 v7, 1, v7\nv_xor_b32 v7, v7, v6')
        a(f'v_lshl_add_u32 v8, v8, 2, v5\nv_mul_u32_u24 v8, s43, v8\nv_lshl_add_u32 v8, v9, 6, v8\nv_lshl_add_u32 v{12+i}, v7, 4, v8')
    n1 = S1 // 2; n2 = S2 // 4
    assert S1 % 2 == 0 and S2 % 4 == 0 and 14 + n1 + n2 + 4 == 32
    a('s_lshr_b32 s3, s2, 7\ns_lshl_b32 s3, s3, 7')
    a('v_lshlrev_b32 v20, 11, v5\nv_lshl_add_u32 v20, v4, 6, v20\nv_lshl_add_u32 v20, v6, 4, v20\nv_xor_b32 v20, s3, v20')
    a(f's_mul_i32 s3, s42, {n1}\ns_and_b32 s3, s3, 1\ns_lshl_b32 s3, s3, 5\nv_xor_b32 v20, s3, v20\nv_xor_b32 v21, 32, v20')
    a('v_lshrrev_b32 v7, 1, v4\nv_lshl_add_u32 v9, v7, 2, v5\nv_and_b32 v8, 1, v4\nv_lshlrev_b32 v8, 6, v8')
    a('v_lshl_add_u32 v22, v9, 11, v8\nv_lshlrev_b32 v7, 1, v7\nv_xor_b32 v7, v7, v6\nv_lshl_add_u32 v22, v7, 4, v22')
    a('s_mov_b32 s43, 12288\nv_mul_u32_u24 v23, s43, v9\nv_add_u32 v23, v23, v8\nv_lshl_add_u32 v23, v6, 4, v23\nv_xor_b32 v24, 32, v23')
    a('v_lshlrev_b32 v8, 10, v4\nv_lshl_add_u32 v8, v5, 6, v8\nv_lshl_add_u32 v8, v6, 3, v8\nv_and_b32 v7, 1, v4\nv_lshl_add_u32 v8, v7, 5, v8')
    a(f's_lshl_b32 s3, s42, 8\ns_add_u32 s3, s3, {QB}\nv_add_u32 v25, s3, v8\nv_xor_b32 v26, 32, v25')
    a('v_lshlrev_b32 v27, 4, v4\nv_mov_b32 v7, 0x7ff00000\nv_cmp_eq_u32 vcc, 0, v3\nv_cndmask_b32 v27, v7, v27, vcc')
    a('s_lshr_b32 s58, s2, 4\ns_and_b32 s59, s2, 15')
    a(f's_mul_i32 s60, s58, {64*7168}\ns_mul_i32 s3, s42, {32*7168}\ns_add_u32 s60, s60, s3\ns_mul_i32 s3, s59, 448\ns_add_u32 s60, s60, s3')
    a(f's_lshl_b32 s61, s59, 4\ns_add_u32 s61, s61, s58\ns_lshl_b32 s61, s61, 1\ns_add_u32 s61, s61, s42\ns_mul_i32 s61, s61, 14336')
    a(f's_lshr_b32 s3, s2, 3\ns_lshl_b32 s3, s3, 1\ns_add_u32 s3, s3, s42\ns_mul_i32 s3, s3, {n1}\ns_and_b32 s43, s2, 7')
    a(f's_lshl_b32 s62, s3, 13\ns_lshl_b32 s63, s43, 8\ns_add_u32 s62, s62, s63\ns_mul_i32 s63, s43, {32*S1}\ns_add_u32 s63, s63, s3\ns_lshl_b32 s63, s63, 10')
    if common.K6MAP: a(f's_lshr_b32 s3, s2, 6\ns_mul_i32 s3, s3, {(14-n1)*131072}\ns_add_u32 s62, s62, s3')
    a(f's_lshl_b32 s43, s58, 1\ns_add_u32 s43, s43, s42\ns_mul_i32 s3, s43, {n2}')
    a(f's_lshl_b32 s64, s3, 14\ns_lshl_b32 s65, s59, 7\ns_add_u32 s64, s64, s65')
    if common.K6MAP: a(f's_lshr_b32 s65, s43, 3\ns_add_u32 s65, s65, 1\ns_mul_i32 s65, s65, {n1*131072}\ns_add_u32 s64, s64, s65')
    else: a(f's_add_u32 s64, s64, {2*KA1*2048}')
    a(f's_mul_i32 s65, s59, {8*S2}\ns_add_u32 s65, s65, s3\ns_lshl_b32 s65, s65, 10\ns_add_u32 s65, s65, {16*S1*16384}')
    a(f's_lshl_b32 s66, s43, 16\ns_lshl_b32 s3, s59, 7\ns_add_u32 s66, s66, s3\ns_lshl_b32 s67, s59, 5\ns_add_u32 s67, s67, s43\ns_lshl_b32 s67, s67, 12')
    a(f's_lshr_b32 s58, s2, 6\ns_and_b32 s59, s2, 63\ns_lshl_b32 s3, s58, 1\ns_add_u32 s3, s3, s42\ns_mul_i32 s68, s3, {128*12288}\ns_lshl_b32 s3, s59, 7\ns_add_u32 s68, s68, s3\ns_add_u32 s68, s68, 4096')
    a(f's_lshl_b32 s69, s42, 14\ns_add_u32 s69, s69, {QB}\ns_lshl_b32 s50, s58, 9')
    a(f's_mul_i32 s51, s58, {6144*4}\ns_lshl_b32 s3, s59, 8\ns_add_u32 s51, s51, s3\ns_lshl_b32 s3, s42, 7\ns_add_u32 s51, s51, s3\ns_add_u32 s51, s51, 8192')
    srd_in(a, 24, 56, 'wo'); srd_ws(a, 28, 6, 'W1T'); srd_ws(a, 32, 6, 'W2T'); srd_in(a, 72, 70, 'wmod'); srd_ws(a, 76, 6, 'SC'); srd_ws(a, 80, 6, 'MODP')
    qloop(False)
    srd_in(a, 16, 52, 'w1'); srd_in(a, 20, 54, 'w2'); srd_ws(a, 36, 6, 'WOT')
    for j in range(pf_delay): a('s_barrier')
    units = []
    for u in range(4): units.append((24, 22, 66, 16384, 36, 67))
    for u in range(14): units.append((16, 12 + u % 7, 60, 16*7168 if u == 6 else 0, 28, 61))
    for u in range(n1): units.append((20, 20 + (u & 1), 62, 8192, 32, 63))
    for u in range(n2): units.append((20, 22, 64, 16384, 32, 65))
    RG = 32; BF = 96
    nb = pf_delay
    L = lambda i: (6 + (8 if i == 0 else 0)) if 0 <= i < 8 else 0
    for i in range(11):
        if 2 <= i < 10:
            b = i - 2
            a(f's_waitcnt vmcnt({(4 if i >= 3 else 0) + L(i-1)})')
            for j in range(4):
                sr, vo, ss, sadd, dr, dsr = units[4*b + j]; r = RG + 16*(b % 3) + 4*j
                a(f'buffer_store_dwordx4 v[{r}:{r+3}], v11, s[{dr}:{dr+3}], s{dsr} offen{rst}\ns_add_u32 s{dsr}, s{dsr}, 1024')
        if i == 0:
            for kb in range(8): a(f'buffer_load_dwordx4 v[{BF+4*kb}:{BF+4*kb+3}], v27, s[76:79], s50 offen offset:{64*kb}')
        if i < 8:
            for j in range(2):
                a(f's_add_u32 m0, s69, {(2*i+j)*1024}\nbuffer_load_dwordx4 v{23+j}, s[72:75], s68 offen lds\ns_add_u32 s68, s68, {8*12288}')
            for j in range(4):
                sr, vo, ss, sadd, dr, dsr = units[4*i + j]; r = RG + 16*(i % 3) + 4*j
                a(f'buffer_load_dwordx4 v[{r}:{r+3}], v{vo}, s[{sr}:{sr+3}], s{ss} offen')
                if sadd: a(f's_add_u32 s{ss}, s{ss}, {sadd}')
        if i < 10: a('s_barrier'); nb += 1
    assert nb <= 17
    if hprio: a(f's_setprio {hprio}')
    AF = 128; DD = 192
    for kb in range(8):
        for nt in range(2):
            r = AF + 8*kb + 4*nt
            for h in range(2): a(f'ds_read_b64_tr_b16 v[{r+2*h}:{r+2*h+1}], v{25+nt} offset:{kb*4096 + h*512}')
    for kb in range(8):
        a(f's_waitcnt lgkmcnt({min(15, 28-4*kb)})')
        for nt in range(2):
            r = AF + 8*kb + 4*nt
            a(f'v_mfma_f32_16x16x32_bf16 v[{DD+4*nt}:{DD+4*nt+3}], v[{r}:{r+3}], v[{BF+4*kb}:{BF+4*kb+3}], ' + (f'v[{DD+4*nt}:{DD+4*nt+3}]' if kb else '0'))
    for nt in range(2): a(f'buffer_store_dwordx4 v[{DD+4*nt}:{DD+4*nt+3}], v27, s[80:83], s51 offen offset:{64*nt}')
    a('s_waitcnt vmcnt(0)')
    stamp(a, 2, 1)
    a(f'{end}:\ns_endpgm')
    k.loader_first(ld, end)
    return k
```

```python
from common import *
import common
from gemm import lin_copy

OFF = 60.0
def k3f(order=(0,1,2,4,3,5), pf_delay=1, prio=1, rdpos=(0,1,2,3), waitpos=5, waitpos2=1, barpos=4, rst=' sc1', hprio=2, pflag=5, ppoll=10, pchk=12, touch=1):
    QB = 65536; HB = 131072; DB = 155648
    SCR = HB; STT = HB + 1024
    KVF, TAG = 0x8000, 0x9000
    k = Kern('k3_attn_kernel', 256, 512, 163840, 208 if not common.STAMPS else 256)
    a = k.a
    end = a.lab('end'); ld = a.lab('loader')
    a(f's_cmp_ge_u32 s2, 256\ns_cbranch_scc1 {end}')
    ldptr(a, 6, 'ws'); ldptr(a, 4, 'x'); ldptr(a, 8, 'c'); ldptr(a, 10, 'wmod'); ldptr(a, 70, 'wq')
    waveid(a); stamp(a, 2, 0)
    a('s_and_b32 s14, s2, 7\ns_lshr_b32 s15, s2, 3\ns_and_b32 s13, s15, 7\ns_lshl_b32 s12, s14, 2\ns_lshr_b32 s3, s15, 3\ns_add_u32 s12, s12, s3')
    a('v_and_b32 v2, 63, v0')
    a(f's_cmp_ge_u32 s95, 4\ns_cbranch_scc1 {ld}')
    S = [16, 32, 48, 64]; O = [80, 96]; NM = [112, 128]; Qr = [144, 152]; Kb = [160, 168]; Vb = [176, 184]; Lr = [192, 196]; ONE = 200
    IDX = 12
    if prio: a(f's_setprio {prio}')
    WM, ACCG, X = 32, 48, 64
    a('v_lshrrev_b32 v4, 1, v0\ns_mov_b32 s3, 49152\nv_mul_u32_u24 v3, s3, v4\nv_and_b32 v5, 1, v0\nv_lshl_add_u32 v3, v5, 4, v3\nv_lshlrev_b32 v4, 3, v4\nv_mov_b32 v8, 0')
    a('s_and_b32 s40, s14, 3\ns_lshl_b32 s40, s40, 5\ns_add_u32 s40, s40, s15\ns_lshr_b32 s41, s14, 2')
    a(f's_mul_i32 s42, s41, {512*12288}\ns_lshl_b32 s3, s40, 5\ns_add_u32 s42, s42, s3\ns_lshl_b32 s43, s41, 10')
    a('s_waitcnt lgkmcnt(0)')
    srd_in(a, 16, 10, 'wmod'); srd_in(a, 20, 8, 'c'); srd_ws(a, 32, 6, 'HO')
    for j in range(4):
        a(f'buffer_load_dwordx4 v[{WM+4*j}:{WM+4*j+3}], v3, s[16:19], s42 offen')
        if j == 0: a(f'buffer_load_dwordx2 v[16:17], v4, s[20:23], s43 offen\ns_mov_b32 s3, {TAG}\nbuffer_load_dword v14, v8, s[32:35], s3 offen sc1')
        if j < 3: a('s_add_u32 s42, s42, 12288')
    a('v_and_b32 v6, 15, v2\nv_lshrrev_b32 v7, 4, v2\nv_lshlrev_b32 v5, 11, v6\nv_lshl_add_u32 v5, v7, 4, v5')
    a('s_lshl_b32 s44, s12, 2\ns_lshr_b32 s3, s13, 1\ns_add_u32 s44, s44, s3')
    a('s_lshl_b32 s42, s44, 15\ns_lshl_b32 s3, s95, 9\ns_add_u32 s42, s42, s3')
    srd_in(a, 20, 4, 'x')
    for s in range(8): a(f'buffer_load_dwordx4 v[{X+4*s}:{X+4*s+3}], v5, s[20:23], s42 offen offset:{64*s}')
    a('v_lshlrev_b32 v9, 4, v2')
    srd_ws(a, 24, 6, 'O'); srd_ws(a, 28, 6, 'KV'); srd_ws(a, 36, 6, 'FLAG'); srd_in(a, 16, 70, 'wq')
    a('v_lshrrev_b32 v3, 5, v2\nv_lshlrev_b32 v10, 11, v3\nv_lshrrev_b32 v4, 2, v2\nv_and_b32 v4, 3, v4\nv_lshl_add_u32 v10, v4, 6, v10')
    a('v_and_b32 v5, 1, v7\nv_lshl_add_u32 v10, v5, 5, v10\nv_and_b32 v11, 3, v2\nv_lshl_add_u32 v10, v11, 3, v10')
    a(f's_lshl_b32 s3, s95, 8\ns_add_u32 s3, s3, {QB}\nv_add_u32 v10, s3, v10')
    a('v_lshl_add_u32 v15, v7, 3, v4\nv_lshlrev_b32 v15, 6, v15\nv_lshl_add_u32 v15, v11, 3, v15\nv_lshl_add_u32 v15, v5, 5, v15')
    a('s_lshl_b32 s3, s95, 14\nv_add_u32 v15, s3, v15\nv_xor_b32 v204, 32, v15\nv_add_u32 v205, s3, v9')
    a('v_lshlrev_b32 v13, 15, v5\nv_lshl_add_u32 v13, v3, 8, v13\nv_lshl_add_u32 v13, v6, 4, v13')
    a('s_lshl_b32 s46, s12, 7\ns_lshl_b32 s3, s13, 2\ns_add_u32 s46, s46, s3\ns_add_u32 s46, s46, s95\ns_lshl_b32 s46, s46, 10')
    a('s_and_b32 s48, s13, 1\ns_cmp_eq_u32 s48, 0\ns_cselect_b64 vcc, -1, 0')
    a('v_cndmask_b32 v206, v3, v5, vcc\nv_cndmask_b32 v207, v5, v3, vcc\nv_lshlrev_b32 v206, 9, v206\nv_lshl_add_u32 v206, v207, 3, v206\nv_lshl_add_u32 v206, v6, 4, v206')
    a('s_and_b32 s3, s44, 1\ns_cmp_eq_u32 s48, 0\ns_cselect_b32 s45, s95, s3\ns_cselect_b32 s47, s3, s95')
    a('s_lshl_b32 s45, s45, 10\ns_lshl_b32 s47, s47, 8\ns_add_u32 s45, s45, s47\ns_lshl_b32 s47, s48, 11\ns_add_u32 s45, s45, s47')
    a('s_lshr_b32 s47, s44, 1\ns_lshl_b32 s47, s47, 12\ns_add_u32 s45, s45, s47')
    a(f's_lshr_b32 s3, s13, 1\ns_lshl_b32 s3, s3, 7\ns_add_u32 s3, s3, {STT}\nv_lshlrev_b32 v207, 3, v6\nv_add_u32 v207, s3, v207')
    a(f's_lshl_b32 s3, s95, 10\ns_add_u32 s3, s3, {DB}\nv_lshlrev_b32 v8, 5, v7\nv_add_u32 v8, s3, v8')
    a(f'v_and_b32 v11, 7, v2\nv_mov_b32 v4, 0x3f803f80\nv_cmp_eq_u32 vcc, 0, v11\nv_cndmask_b32 v{ONE}, 0, v4, vcc\nv_cndmask_b32 v{ONE+1}, 0, v4, vcc')
    a(f'v_cmp_eq_u32 vcc, 4, v11\nv_cndmask_b32 v{ONE+2}, 0, v4, vcc\nv_cndmask_b32 v{ONE+3}, 0, v4, vcc')
    a(f'v_mov_b32 v{IDX}, 0xdddddddd')
    a(f'v_and_b32 v11, 1, v2\nv_lshlrev_b32 v11, 5, v11\nv_lshl_add_u32 v11, v7, 3, v11\ns_lshl_b32 s3, s95, 6\ns_add_u32 s3, s3, {SCR}\nv_add_u32 v11, s3, v11')
    a(f'v_and_b32 v4, 31, v2\nv_xor_b32 v4, v4, v3\nv_lshlrev_b32 v4, 4, v4\nv_lshl_add_u32 v4, v3, 9, v4\nv_add_u32 v4, {HB}, v4')
    a('v_xor_b32 v5, 32, v4\nv_xor_b32 v6, 64, v4\nv_xor_b32 v7, 0x60, v4')
    a(f's_mov_b32 s50, {f32(-LOG2E)}\ns_mov_b32 s51, 0x9e3779b1')
    a('s_waitcnt vmcnt(11)')
    a('v_mul_lo_u32 v14, v14, s51\nv_add_u32 v14, 0x7f4a7c15, v14')
    for j in range(2): unpk(a, 18+2*j, 19+2*j, 16+j)
    for j in range(4): a(f'v_mul_f32 v{22+j}, s50, v{18+j}')
    for j in range(4): a(f'v_exp_f32 v{22+j}, v{22+j}')
    a('v_readfirstlane_b32 s49, v14')
    for j in range(4): a(f'v_add_f32 v{22+j}, 1.0, v{22+j}')
    for j in range(4): a(f'v_rcp_f32 v{22+j}, v{22+j}')
    for j in range(4): a(f'v_mul_f32 v{18+j}, v{18+j}, v{22+j}')
    for j in range(2): rbf2(a, 18+2*j, 19+2*j, 22+j)
    for j in range(4):
        if j: a(f's_waitcnt vmcnt({11-j})')
        for r in range(4): unpk(a, 56+2*r, 57+2*r, WM+4*j+r)
        for r in range(8): a(f'v_mul_f32 v{ACCG+r}, v{56+r}, v{18+j}' if j == 0 else f'v_fmac_f32 v{ACCG+r}, v{56+r}, v{18+j}')
    G = ACCG
    for r in range(4): a(f'v_permlane32_swap_b32 v{G+r}, v{G+4+r}')
    for r in range(4): a(f'v_add_f32 v{G+r}, v{G+r}, v{G+4+r}')
    for r in range(2): a(f'v_permlane16_swap_b32 v{G+r}, v{G+2+r}')
    for r in range(2): a(f'v_add_f32 v{G+r}, v{G+r}, v{G+2+r}')
    for rr in (8, 4, 2):
        for r in range(2): a(f'v_add_f32_dpp v{G+r}, v{G+r}, v{G+r} row_ror:{rr} row_mask:0xf bank_mask:0xf')
    a(f's_lshl_b32 s3, s95, 2\ns_add_u32 s3, s3, {SCR+256}\nv_mov_b32 v16, s3')
    a(f's_mov_b32 exec_lo, 0x00030003\ns_mov_b32 exec_hi, 0x00030003\nds_write_b64 v11, v[{G}:{G+1}]\ns_mov_b64 exec, 1\nds_write_b32 v16, v14\ns_mov_b64 exec, -1')
    np_ = a.lab('np'); pj = a.lab('pj'); sp = a.lab('sp'); so = a.lab('so')
    a(f's_cmp_lg_u32 s95, 0\ns_cbranch_scc1 {np_}')
    a(f'v_mov_b32 v16, {SCR+256}\nv_and_b32 v17, 15, v2\nv_lshlrev_b32 v26, 3, v17\nv_lshlrev_b32 v17, 2, v17\nv_add_u32 v17, {SCR}, v17')
    a(f's_lshl_b32 s42, s41, 14\ns_lshl_b32 s3, s40, 7\ns_add_u32 s42, s42, s3\ns_mov_b32 s52, 0x100000')
    a(f'{sp}:\nds_read_b128 v[20:23], v16\nds_read2_b32 v[18:19], v17 offset0:0 offset1:16\nds_read2_b32 v[24:25], v17 offset0:32 offset1:48')
    a('s_waitcnt lgkmcnt(2)\nv_xor_b32 v21, v21, v14\nv_xor_b32 v22, v22, v14\nv_xor_b32 v23, v23, v14\nv_or3_b32 v21, v21, v22, v23\nv_cmp_eq_u32 vcc, 0, v21')
    a(f's_waitcnt lgkmcnt(0)\ns_cbranch_vccnz {so}\ns_sub_u32 s52, s52, 1\ns_cbranch_scc0 {sp}\n{so}:')
    a('v_add_f32 v18, v18, v19\nv_add_f32 v24, v24, v25\nv_mov_b32 v19, v14\nv_add_f32 v18, v18, v24')
    a(f's_mov_b64 exec, 0xffff\nbuffer_store_dwordx2 v[18:19], v26, s[32:35], s42 offen sc1\ns_mov_b64 exec, -1\ns_branch {pj}')
    a(f'{np_}:\nv_mov_b32 v18, 0\nv_and_b32 v17, 31, v2\nv_lshlrev_b32 v17, 2, v17\ns_lshl_b32 s3, s2, 7\nbuffer_store_dword v18, v17, s[36:39], s3 offen\n{pj}:')
    stamp(a, 17, 0)
    a(f'v_lshlrev_b32 v17, 6, v2\ns_mul_i32 s42, s15, {24*2048}\ns_mul_i32 s3, s95, 12288\ns_add_u32 s42, s42, s3\ns_add_u32 s42, s42, {256*2048}')
    for j in range(3 if touch else 0):
        a('buffer_load_dword v16, v17, s[16:19], s42 offen')
        if j < 2: a('s_add_u32 s42, s42, 4096')
    a('s_barrier')
    a(f'ds_read_b64 v[20:21], v207\ns_waitcnt vmcnt({4 if touch else 1}) lgkmcnt(0)')
    for r in range(32):
        t = 22 + 2*(r % 4)
        unpk(a, t, t+1, X+r)
        a(f'v_fma_f32 v{t}, v{t}, v20, v21\nv_fma_f32 v{t+1}, v{t+1}, v20, v21\nv_cvt_pk_bf16_f32 v{X+r}, v{t}, v{t+1}')
    stamp(a, 17, 1)
    R = 96
    sw = a.lab('sw'); swo = a.lab('swo')
    a(f's_lshl_b32 s42, s95, 12\ns_add_u32 s43, s42, 16384\ns_mov_b32 s52, 0x100000\ns_cmp_ge_u32 s95, 2\ns_cselect_b32 s53, 1.0, 0')
    a(f'v_lshlrev_b32 v16, 3, v2\ns_lshl_b32 s3, s95, 11\ns_add_u32 s3, s3, {DB}\nv_add_u32 v16, s3, v16')
    a(f'{sw}:')
    for u in range(4):
        for s_ in range(2): a(f'buffer_load_dwordx4 v[{R+8*u+4*s_}:{R+8*u+4*s_+3}], v9, s[32:35], s{42+s_} offen offset:{1024*u} sc1')
    for u in range(4):
        a(f's_waitcnt vmcnt({6-2*u})')
        b = R + 8*u
        if u == 0: a(f'v_bitop3_b32 v17, v{b+1}, v{b+3}, v{b+5} bitop3:0x80\nv_or3_b32 v18, v{b+1}, v{b+3}, v{b+5}\nv_and_b32 v17, v17, v{b+7}\nv_or_b32 v18, v18, v{b+7}')
        else:
            for p in (1, 5): a(f'v_bitop3_b32 v17, v17, v{b+p}, v{b+p+2} bitop3:0x80\nv_or3_b32 v18, v18, v{b+p}, v{b+p+2}')
        a(f'v_add_f32 v{b}, v{b}, v{b+4}\nv_add_f32 v{b+1}, v{b+2}, v{b+6}')
    a(f'v_xor_b32 v17, v17, v14\nv_xor_b32 v18, v18, v14\nv_or_b32 v17, v17, v18\nv_cmp_ne_u32 vcc, 0, v17\ns_cbranch_vccz {swo}')
    a(f's_sub_u32 s52, s52, 1\ns_cbranch_scc0 {sw}\n{swo}:')
    stamp(a, 18, 0)
    for u in range(4): rbf2(a, R+8*u, R+8*u+1, R+8*u+2)
    for u in range(4): a(f'v_add_f32 v{R+8*u}, s53, v{R+8*u}\nv_add_f32 v{R+8*u+1}, s53, v{R+8*u+1}')
    for u in range(4): rbf2(a, R+8*u, R+8*u+1, R+8*u+2)
    for u in range(4): a(f'ds_write_b64 v16, v[{R+8*u}:{R+8*u+1}] offset:{512*u}')
    a('s_waitcnt lgkmcnt(0)\ns_barrier')
    stamp(a, 18, 1)
    U = 16; GS = 160; WF = 96
    def rd_gs(s):
        b = GS + 16*(s % 2)
        a(f'ds_read_b128 v[{b}:{b+3}], v8 offset:{4096+128*s}\nds_read_b128 v[{b+4}:{b+7}], v8 offset:{4096+128*s+16}')
        a(f'ds_read_b128 v[{b+8}:{b+11}], v8 offset:{128*s}\nds_read_b128 v[{b+12}:{b+15}], v8 offset:{128*s+16}')
    def rd_w(s):
        for ft in range(2):
            d = WF + 8*s + 4*ft
            a(f'ds_read_b64_tr_b16 v[{d}:{d+1}], v{(15, 204)[ft]} offset:{s*2048}\nds_read_b64_tr_b16 v[{d+2}:{d+3}], v{(15, 204)[ft]} offset:{s*2048+256}')
    vlab = a.lab('vpath'); join = a.lab('join')
    rd_gs(0)
    a(f's_cmp_eq_u32 s48, 1\ns_cbranch_scc1 {vlab}')
    KA_ = 24
    for half in range(2):
        if half == 1: a(f's_branch {join}\n{vlab}:')
        def mm(s):
            for ft in range(2):
                d = WF + 8*s + 4*ft; c = f'v[{KA_+4*ft}:{KA_+3+4*ft}]' if s else '0'
                A, B = (f'v[{d}:{d+3}]', f'v[{X+4*s}:{X+4*s+3}]')
                if half: A, B = B, A
                a(f'v_mfma_f32_16x16x32_bf16 v[{KA_+4*ft}:{KA_+3+4*ft}], {A}, {B}, {c}')
        for s in range(8):
            rd_w(s)
            if s < 7: rd_gs(s+1)
            for j in range(4): unpk(a, U+2*j, U+2*j+1, X+4*s+j)
            a(f's_waitcnt lgkmcnt({8 if s < 7 else 4})')
            if s: mm(s-1)
            b = GS + 16*(s % 2)
            for j in range(8): a(f'v_fma_f32 v{U+j}, v{U+j}, v{b+j}, v{b+8+j}')
            for j in range(4): a(f'v_cvt_pk_bf16_f32 v{X+4*s+j}, v{U+2*j}, v{U+2*j+1}')
        a('s_waitcnt lgkmcnt(0)')
        mm(7)
    a(f'{join}:')
    a(f'ds_write_b128 v205, v[{KA_}:{KA_+3}]\nds_write_b128 v205, v[{KA_+4}:{KA_+7}] offset:1024')
    a('s_lshl_b32 s3, s95, 10\nv_add_u32 v205, s3, v9')
    a('s_waitcnt lgkmcnt(0)\ns_barrier')
    stamp(a, 11, 0)
    ACC = [16, 32]; P = 48; Q = 160
    def reads(Rb, st, sub):
        out = []
        for i in range(2):
            ks = 2*sub + i; b = Rb + 12*i; wo = (st % 4)*16384 + ks*4096; ho = (st % 3)*8192 + ks*1024
            out += [f'ds_read_b64_tr_b16 v[{b}:{b+1}], v10 offset:{wo}', f'ds_read_b64_tr_b16 v[{b+2}:{b+3}], v10 offset:{wo+1024}',
                    f'ds_read_b128 v[{b+4}:{b+7}], v{4+ks} offset:{ho}', f'ds_read_b128 v[{b+8}:{b+11}], v{4+ks} offset:{ho+4096}']
        return out
    def mf(Rb, first=False):
        return [f'v_mfma_f32_32x32x16_bf16 v[{ACC[j]}:{ACC[j]+15}], v[{Rb+12*i}:{Rb+12*i+3}], v[{Rb+12*i+4+4*j}:{Rb+12*i+7+4*j}], ' + ('0' if first and i == 0 else f'v[{ACC[j]}:{ACC[j]+15}]')
                for i in range(2) for j in range(2)]
    def inter(m, r, extra=()):
        r = list(r) + list(extra); per = -(-len(r) // len(m))
        for x in m:
            a(x)
            for _ in range(per):
                if r: a(r.pop(0))
    for x in reads(P, 0, 0): a(x)
    nk = a.lab('nk')
    a(f's_cmp_ge_u32 s95, 2\ns_cbranch_scc1 {nk}')
    KR = 112
    for w in range(4): a(f'ds_read_b128 v[{KR+4*w}:{KR+3+4*w}], v205 offset:{16384*w}')
    a('s_waitcnt lgkmcnt(2)')
    for j in range(4): a(f'v_add_f32 v{KR+j}, v{KR+j}, v{KR+4+j}')
    a('s_waitcnt lgkmcnt(0)')
    for j in range(4): a(f'v_add_f32 v{KR+8+j}, v{KR+8+j}, v{KR+12+j}')
    for j in range(4): a(f'v_add_f32 v{KR+j}, v{KR+j}, v{KR+8+j}')
    a(f'v_cvt_pk_bf16_f32 v{KR}, v{KR}, v{KR+1}\nv_cvt_pk_bf16_f32 v{KR+1}, v{KR+2}, v{KR+3}')
    a(f'buffer_store_dwordx2 v[{KR}:{KR+1}], v206, s[28:31], s45 offen sc1\n{nk}:')
    zer = [f'v_mov_b32 v{O[0]+j}, 0' for j in range(32)] + [f'v_mov_b32 v{Lr[0]+j}, 0' for j in range(8)] + [f'v_mov_b32 v{Vb[1]+j}, 0' for j in range(8)]
    for st in range(16):
        a('s_waitcnt lgkmcnt(0)')
        inter(mf(P, st == 0), reads(Q, st, 1), zer[8*(st-1):8*st] if 1 <= st <= 6 else [])
        a('s_waitcnt lgkmcnt(0)')
        if st == 15: break
        if st + 1 == pflag: a('s_waitcnt vmcnt(0)')
        a('s_barrier')
        inter(mf(Q), reads(P, st+1, 0))
        if st + 1 == pflag:
            l = a.lab('nf')
            a(f's_cmp_lg_u32 s95, 0\ns_cbranch_scc1 {l}\ns_lshl_b32 s3, s2, 4\ns_add_u32 s3, s3, {KVF}\ns_mov_b64 exec, 1\nbuffer_store_dword v14, v9, s[32:35], s3 offen sc1\ns_mov_b64 exec, -1\n{l}:')
        pl = [f'buffer_load_dword v{204+j}, v9, s[32:35], s42 offen offset:{1024*j} sc1' for j in range(4)]
        if st + 1 == ppoll:
            l = a.lab('npl')
            a(f's_cmp_lt_u32 s95, 2\ns_cbranch_scc1 {l}\ns_mov_b32 s42, {KVF}')
            for x in pl: a(x)
            a(f'{l}:')
        if st + 1 == pchk:
            l = a.lab('nck'); p0 = a.lab('p0'); p1 = a.lab('p1'); nt = a.lab('nt')
            a(f's_cmp_lt_u32 s95, 2\ns_cbranch_scc1 {l}\ns_mov_b32 s52, 0x100000\n{p0}:\ns_waitcnt vmcnt(0)')
            a('v_xor_b32 v204, v204, v14\nv_xor_b32 v205, v205, v14\nv_xor_b32 v206, v206, v14\nv_xor_b32 v207, v207, v14\nv_or3_b32 v204, v204, v205, v206\nv_or_b32 v204, v204, v207')
            a(f'v_cmp_ne_u32 vcc, 0, v204\ns_cbranch_vccz {p1}')
            for x in pl: a(x)
            a(f's_sub_u32 s52, s52, 1\ns_cbranch_scc0 {p0}\n{p1}:')
            stamp(a, 20, 0)
            a('s_sub_u32 s42, s95, 2\ns_lshl_b32 s42, s42, 13')
            for c in range(2):
                for g_ in range(2):
                    a(f's_add_u32 m0, s42, {c*16384 + g_*4096}\ns_add_u32 s3, s42, {c*16384 + g_*4096}')
                    for i in range(4): a(f'buffer_load_dwordx4 v9, s[28:31], s3 offen offset:{1024*i} sc1 lds')
            a(f's_lshl_b32 s3, s2, 2\ns_add_u32 s3, s3, s95\ns_cmp_lg_u32 s3, 2\ns_cbranch_scc1 {l}\ns_mov_b32 s3, {TAG}\ns_mov_b64 exec, 1\nbuffer_store_dword v14, v9, s[32:35], s3 offen sc1\ns_mov_b64 exec, -1')
            a(f'{l}:')
    for x in mf(Q): a(x)
    stamp(a, 6, 0)
    for j in range(16): a(f'v_mov_b32 v{S[3]+j}, 0')
    a(f's_mov_b32 s44, {f32(LOG2E / 32**0.5)}')
    a('v_mov_b32 v10, v9\nv_add_u32 v11, 16384, v9\ns_mov_b32 s40, 16384')
    for q in range(2):
        for j in range(16): a(f'v_mul_f32 v{ACC[q]+j}, s44, v{ACC[q]+j}')
        for j in range(8): a(f'v_cvt_pk_bf16_f32 v{Qr[q]+j}, v{ACC[q]+2*j}, v{ACC[q]+2*j+1}')
    a('s_waitcnt vmcnt(0)\ns_barrier')
    a(f'ds_read_b128 v[{Kb[0]}:{Kb[0]+3}], v10\nds_read_b128 v[{Kb[0]+4}:{Kb[0]+7}], v10 offset:1024')
    def qk(D, kb, q, C):
        return [f'v_mfma_f32_32x32x16_bf16 v[{D}:{D+15}], v[{kb}:{kb+3}], v[{Qr[q]}:{Qr[q]+3}], {C}',
                f'v_mfma_f32_32x32x16_bf16 v[{D}:{D+15}], v[{kb+4}:{kb+7}], v[{Qr[q]+4}:{Qr[q]+7}], v[{D}:{D+15}]']
    def pv(Z, vb, q):
        return [f'v_smfmac_f32_32x32x32_bf16 v[{O[q]}:{O[q]+15}], v[{vb}:{vb+3}], v[{Z}:{Z+7}], v{IDX}',
                f'v_smfmac_f32_32x32x32_bf16 v[{O[q]}:{O[q]+15}], v[{vb+4}:{vb+7}], v[{Z+8}:{Z+15}], v{IDX}',
                f'v_smfmac_f32_16x16x64_bf16 v[{Lr[q]}:{Lr[q]+3}], v[{ONE}:{ONE+3}], v[{Z}:{Z+7}], v{IDX}',
                f'v_smfmac_f32_16x16x64_bf16 v[{Lr[q]}:{Lr[q]+3}], v[{ONE}:{ONE+3}], v[{Z+8}:{Z+15}], v{IDX}']
    def max16(d, X_, init):
        if init: a(f'v_max3_f32 v{d}, v{X_}, v{X_+1}, v{X_+2}\nv_max_f32 v{d}, v{d}, v{X_+15}'); r = range(3, 15, 2)
        else: r = range(0, 16, 2)
        for j in r: a(f'v_max3_f32 v{d}, v{d}, v{X_+j}, v{X_+j+1}')
    def setneg(off):
        for q in range(2):
            a(f'v_mov_b32 v5, v{3+q}\nv_permlane32_swap_b32 v5, v{3+q}\nv_max_f32 v5, v5, v{3+q}\nv_sub_f32 v{NM[q]}, {f32(-off)}, v5')
            for j in range(1, 16): a(f'v_mov_b32 v{NM[q]+j}, v{NM[q]}')
    a('s_waitcnt lgkmcnt(0)')
    for x in qk(S[1], Kb[0], 0, '0') + qk(S[2], Kb[0], 1, '0'): a(x)
    max16(3, S[1], True); max16(4, S[2], True)
    setneg(OFF)
    for x in qk(S[0], Kb[0], 0, f'v[{NM[0]}:{NM[0]+15}]'): a(x)
    a('s_mov_b32 s41, 16\ns_nop 9')
    stamp(a, 6, 1); stamp(a, 12, 0, cyc=True)
    M = a.lab('main')
    a(f'.p2align 6\n{M}:')
    for t in range(8):
        X_, Y, Z = S[t % 4], S[(t+1) % 4], S[(t-1) % 4]
        qn = (t+1) & 1; qp = (t-1) & 1
        m = qk(Y, Kb[((t+1) >> 1) & 1], qn, f'v[{NM[qn]}:{NM[qn]+15}]') + pv(Z, Vb[((t-1) >> 1) & 1], qp)
        m = [m[i] for i in order]
        post = [[] for _ in range(6)]
        if t % 2 == 0:
            j = t//2; b = Vb[j & 1]; off = j*4096 + 2048
            dv = [f'ds_read_b128 v[{b}:{b+3}], v10 offset:{off}', f'ds_read_b128 v[{b+4}:{b+7}], v10 offset:{off+1024}']
            j = t//2 + 1; b = Kb[j & 1]; va, off = (10, j*4096) if j < 4 else (11, 0)
            dk = [f'ds_read_b128 v[{b}:{b+3}], v{va} offset:{off}', f'ds_read_b128 v[{b+4}:{b+7}], v{va} offset:{off+1024}']
            for i, x in zip(rdpos, dk + dv): post[i].append(x)
        else:
            post[waitpos2].append('s_waitcnt lgkmcnt(0)')
        if t % 2 == 0 and waitpos is not None: post[waitpos].append('s_waitcnt lgkmcnt(2)')
        if t == 5: post[barpos].append('s_barrier')
        if t == 7:
            post[0] += ['s_add_u32 s40, s40, 16384', 's_and_b32 s40, s40, 0xffff']
            post[1] += ['s_sub_u32 s41, s41, 1', 's_cmp_lg_u32 s41, 0', 'v_mov_b32 v10, v11', 'v_add_u32 v11, s40, v9']
        e = [f'v_exp_f32 v{X_+i}, v{X_+i}' for i in range(16)]
        w = [2 if '32x32' in x else 1 for x in m]; tot = sum(w); acc = 0; used = 0
        for i, x in enumerate(m):
            a(x)
            for y in post[i]: a(y)
            acc += w[i]; upto = (16*acc + tot//2)//tot
            for y in e[used:upto]: a(y)
            used = upto
    a(f's_cbranch_scc1 {M}')
    stamp(a, 12, 1, cyc=True); stamp(a, 7, 0)
    for x in pv(S[3], Vb[1], 1): a(x)
    a('s_mov_b32 s47, 0')
    EP = a.lab('epi'); FB = a.lab('fallback'); DONE = a.lab('done')
    a(f'{EP}:')
    a(f'v_rcp_f32 v3, v{Lr[0]}')
    a(f'v_mov_b32 v6, 0\nv_mov_b32 v7, 0\nv_mov_b32 v14, 0\nv_mov_b32 v15, 0\ns_mov_b32 s44, {f32(2.0**100)}')
    for q in range(2):
        if q == 1: a(f'v_rcp_f32 v4, v{Lr[1]}\ns_add_u32 s48, s46, 65536')
        for j in range(0, 16, 2):
            c = 6 if (j & 2) else 14
            a(f'v_pk_fma_f32 v[{c}:{c+1}], v[{O[q]+j}:{O[q]+j+1}], 0, v[{c}:{c+1}]')
        for j in range(16): a(f'v_mul_f32 v{S[q]+j}, v{O[q]+j}, v{3+q}')
        for j in range(8): a(f'v_cvt_pk_bf16_f32 v{S[2]+8*q+j}, v{S[q]+2*j}, v{S[q]+2*j+1}')
        for j in range(2): a(f'buffer_store_dwordx4 v[{S[2]+8*q+4*j}:{S[2]+8*q+4*j+3}], v13, s[24:27], s{46+2*q} offen offset:{512*j}{common.ST}')
    a('v_add_f32 v6, v6, v7\nv_add_f32 v14, v14, v15\nv_cmp_u_f32 s[50:51], v6, v14')
    a(f'v_cmp_nge_f32 s[52:53], s44, v{Lr[0]}\nv_cmp_nge_f32 s[54:55], s44, v{Lr[1]}')
    a('s_or_b64 s[50:51], s[50:51], s[52:53]\ns_or_b64 s[50:51], s[50:51], s[54:55]')
    a(f's_cbranch_scc1 {FB}')
    a(f'{DONE}:')
    stamp(a, 2, 1)
    a('s_endpgm')
    a(f'{FB}:')
    a(f's_cmp_eq_u32 s47, 1\ns_cbranch_scc1 {DONE}\ns_mov_b32 s47, 1\ns_waitcnt vmcnt(0)')
    a('v_mov_b32 v3, 0xff800000\nv_mov_b32 v4, 0xff800000\ns_mov_b32 s40, 0')
    F1 = a.lab('f1'); F2 = a.lab('f2')
    a(f'{F1}:')
    a(f'buffer_load_dwordx4 v[{Kb[0]}:{Kb[0]+3}], v9, s[28:31], s40 offen sc1\nbuffer_load_dwordx4 v[{Kb[0]+4}:{Kb[0]+7}], v9, s[28:31], s40 offen offset:1024 sc1')
    a('s_waitcnt vmcnt(0)')
    for x in qk(S[1], Kb[0], 0, '0') + qk(S[2], Kb[0], 1, '0'): a(x)
    max16(3, S[1], False); max16(4, S[2], False)
    a(f's_add_u32 s40, s40, 4096\ns_cmp_lt_u32 s40, 262144\ns_cbranch_scc1 {F1}')
    setneg(11.0)
    for j in range(32): a(f'v_mov_b32 v{O[0]+j}, 0')
    for j in range(8): a(f'v_mov_b32 v{Lr[0]+j}, 0')
    a(f's_mov_b32 s40, 0\n{F2}:')
    for j in range(2):
        a(f'buffer_load_dwordx4 v[{Kb[0]+4*j}:{Kb[0]+4*j+3}], v9, s[28:31], s40 offen offset:{1024*j} sc1')
        a(f'buffer_load_dwordx4 v[{Vb[0]+4*j}:{Vb[0]+4*j+3}], v9, s[28:31], s40 offen offset:{2048+1024*j} sc1')
    a('s_waitcnt vmcnt(0)')
    for q in range(2):
        for x in qk(S[q], Kb[0], q, f'v[{NM[q]}:{NM[q]+15}]'): a(x)
    for q in range(2):
        for i in range(16): a(f'v_exp_f32 v{S[q]+i}, v{S[q]+i}')
    for q in range(2):
        for x in pv(S[q], Vb[0], q): a(x)
    a(f's_add_u32 s40, s40, 4096\ns_cmp_lt_u32 s40, 262144\ns_cbranch_scc1 {F2}')
    a(f's_branch {EP}')

    a(f'{ld}:')
    ldptr(a, 52, 'w1'); ldptr(a, 54, 'w2'); ldptr(a, 56, 'wo'); ldptr(a, 58, 'wk'); ldptr(a, 60, 'wv')
    XH = 64
    xr = lambda s, j: XH + 8*s + 4*j
    a('s_sub_u32 s42, s95, 4\nv_lshlrev_b32 v11, 4, v2\nv_lshrrev_b32 v30, 3, v2\nv_and_b32 v31, 7, v2')
    a('v_lshlrev_b32 v28, 11, v30\nv_lshl_add_u32 v28, v31, 4, v28\nv_add_u32 v29, 16384, v28')
    a('s_lshl_b32 s43, s12, 17\ns_lshl_b32 s3, s42, 15\ns_add_u32 s43, s43, s3')
    a('s_waitcnt lgkmcnt(0)')
    srd_in(a, 20, 4, 'x')
    for s in range(16):
        for j in range(2): a(f'buffer_load_dwordx4 v[{xr(s,j)}:{xr(s,j)+3}], v{28+j}, s[20:23], s43 offen offset:{128*s}')
    srd_in(a, 24, 8, 'c')
    a('v_lshlrev_b32 v3, 3, v2\ns_lshr_b32 s3, s2, 6\ns_lshl_b32 s3, s3, 9\nbuffer_load_dwordx2 v[0:1], v3, s[24:27], s3 offen')
    a('s_and_b32 s3, s13, 1\ns_cmp_eq_u32 s3, 0\ns_cselect_b32 s58, s58, s60\ns_cselect_b32 s59, s59, s61')
    srd_in(a, 24, 58, 'wk'); srd_in(a, 16, 70, 'wq')
    a(f'v_lshlrev_b32 v3, 5, v31\nv_add_u32 v3, {DB}, v3')
    a(f'v_xor_b32 v4, v30, v31\nv_lshlrev_b32 v4, 4, v4\nv_lshl_add_u32 v4, v31, 9, v4\ns_lshr_b32 s3, s42, 1\ns_lshl_b32 s3, s3, 12\ns_and_b32 s44, s42, 1\ns_lshl_b32 s44, s44, 8')
    a(f's_add_u32 s3, s3, s44\ns_add_u32 s3, s3, {HB}\nv_add_u32 v4, s3, v4')
    a('v_lshrrev_b32 v6, 4, v2\nv_lshrrev_b32 v7, 2, v2\nv_and_b32 v5, 3, v7\nv_and_b32 v8, 3, v2')
    a('v_lshlrev_b32 v5, 11, v5\nv_lshl_add_u32 v5, v6, 6, v5\nv_lshl_add_u32 v5, v8, 4, v5')
    a('v_lshrrev_b32 v29, 5, v2\nv_lshlrev_b32 v29, 1, v29\nv_xor_b32 v29, v8, v29\nv_lshlrev_b32 v28, 6, v7\nv_lshl_add_u32 v28, v29, 4, v28')
    a('v_add_u32 v6, 7168, v5\nv_add_u32 v7, 14336, v5\nv_add_u32 v8, 21504, v5')
    a(f's_lshl_b32 s44, s42, 14\ns_lshl_b32 s36, s13, 8\ns_lshl_b32 s3, s42, 15\ns_add_u32 s36, s36, s3\ns_lshl_b32 s45, s42, 12\ns_add_u32 s45, s45, {QB}')
    a(f'v_lshlrev_b32 v29, 3, v30\ns_lshl_b32 s3, s42, 7\ns_add_u32 s3, s3, {STT}\nv_add_u32 v29, s3, v29\ns_mov_b32 s46, 0x3f803f80')
    def wq_issue(st, part=(0, 1, 2, 3)):
        if part[0] == 0: a(f's_add_u32 m0, s45, {(st % 4)*16384}')
        for i in part: a(f'buffer_load_dwordx4 v{5+i}, s[16:19], s36 offen offset:{1024*i} lds')
        if part[-1] == 3: a('s_add_u32 s36, s36, 131072')
    SA = 40
    for s in range(16):
        a('s_waitcnt vmcnt(31)')
        for r in range(4):
            for j in range(2):
                x_ = xr(s, j) + r; c1 = SA + 2*j + (r & 1); c2 = c1 + 4; first = s == 0 and r < 2
                a(f'v_dot2_f32_bf16 v{c1}, v{x_}, s46, ' + ('0' if first else f'v{c1}'))
                a(f'v_dot2_f32_bf16 v{c2}, v{x_}, v{x_}, ' + ('0' if first else f'v{c2}'))
        if s < 8:
            if s % 2 == 0: a(f's_mov_b32 m0, s44')
            for i in range(2): a(f'buffer_load_dwordx4 v28, s[24:27], s44 offen offset:{((2*s+i) % 4)*1024} lds')
            if s % 2 == 1: a('s_add_u32 s44, s44, 4096')
        else: wq_issue((s-8)//2, (0, 1) if s % 2 == 0 else (2, 3))
    for c in range(0, 8, 2): a(f'v_add_f32 v{SA+c}, v{SA+c}, v{SA+c+1}')
    for d in ('quad_perm:[1,0,3,2]', 'quad_perm:[2,3,0,1]', 'row_half_mirror'):
        for c in range(0, 8, 2): a(f'v_add_f32_dpp v{SA+c}, v{SA+c}, v{SA+c} {d} row_mask:0xf bank_mask:0xf')
    RN = 48
    for j in range(2):
        a(f'v_mul_f32 v{SA+1+2*j}, {f32(-1/1024)}, v{SA+2*j}\nv_mul_f32 v{SA+5+2*j}, {f32(1/1024)}, v{SA+4+2*j}')
    for j in range(2):
        a(f'v_fma_f32 v{SA+5+2*j}, -v{SA+1+2*j}, v{SA+1+2*j}, v{SA+5+2*j}\nv_max_f32 v{SA+5+2*j}, 0, v{SA+5+2*j}\nv_add_f32 v{SA+5+2*j}, {f32(1e-5)}, v{SA+5+2*j}')
    for j in range(2): a(f'v_rsq_f32 v{RN+2*j}, v{SA+5+2*j}')
    for j in range(2): a(f'v_mul_f32 v{RN+1+2*j}, v{SA+1+2*j}, v{RN+2*j}')
    a(f's_mov_b32 exec_lo, 0x01010101\ns_mov_b32 exec_hi, 0x01010101\nds_write_b64 v29, v[{RN}:{RN+1}]\nds_write_b64 v29, v[{RN+2}:{RN+3}] offset:64\ns_mov_b64 exec, -1')
    stamp(a, 19, 0)
    a('s_waitcnt lgkmcnt(0)\ns_barrier')
    TT = 192
    for s in range(16):
        for j in range(2):
            for r in range(4):
                t = TT + 2*((4*j + r) % 8); x_ = xr(s, j) + r
                unpk(a, t, t+1, x_)
                a(f'v_fma_f32 v{t}, v{t}, v{RN+2*j}, v{RN+1+2*j}\nv_fma_f32 v{t+1}, v{t+1}, v{RN+2*j}, v{RN+1+2*j}\nv_cvt_pk_bf16_f32 v{x_}, v{t}, v{t+1}')
    S1, S2 = KA1 // 64, KC2 // 64
    a('s_and_b32 s48, s42, 1')
    t3, t4, t5, t6, t7, t8, t9 = range(32, 39)
    a(f'v_and_b32 v{t3}, 15, v2\nv_lshrrev_b32 v{t4}, 4, v2\nv_lshrrev_b32 v{t5}, 2, v2\nv_and_b32 v{t5}, 3, v{t5}\nv_and_b32 v{t6}, 3, v2\ns_mov_b32 s43, 7168')
    for i in range(7):
        a(f'v_add_u32 v{t7}, {4*i}, v{t4}\nv_mul_u32_u24 v{t8}, 9363, v{t7}\nv_lshrrev_b32 v{t8}, 16, v{t8}')
        a(f'v_mul_u32_u24 v{t9}, 7, v{t8}\nv_sub_u32 v{t9}, v{t7}, v{t9}\nv_and_b32 v{t7}, 1, v{t8}\nv_lshlrev_b32 v{t7}, 1, v{t7}\nv_xor_b32 v{t7}, v{t7}, v{t6}')
        a(f'v_lshl_add_u32 v{t8}, v{t8}, 2, v{t5}\nv_mul_u32_u24 v{t8}, s43, v{t8}\nv_lshl_add_u32 v{t8}, v{t9}, 6, v{t8}\nv_lshl_add_u32 v{12+i}, v{t7}, 4, v{t8}')
    n1 = S1 // 2; n2 = S2 // 4
    assert S1 % 2 == 0 and S2 % 4 == 0 and 14 + n1 + n2 + 4 == 32
    a('s_lshr_b32 s3, s2, 7\ns_lshl_b32 s3, s3, 7')
    a(f'v_lshlrev_b32 v20, 11, v{t5}\nv_lshl_add_u32 v20, v{t4}, 6, v20\nv_lshl_add_u32 v20, v{t6}, 4, v20\nv_xor_b32 v20, s3, v20')
    a(f's_mul_i32 s3, s48, {n1}\ns_and_b32 s3, s3, 1\ns_lshl_b32 s3, s3, 5\nv_xor_b32 v20, s3, v20\nv_xor_b32 v21, 32, v20')
    a(f'v_lshrrev_b32 v{t7}, 1, v{t4}\nv_lshl_add_u32 v{t9}, v{t7}, 2, v{t5}\nv_and_b32 v{t8}, 1, v{t4}\nv_lshlrev_b32 v{t8}, 6, v{t8}')
    a(f'v_lshl_add_u32 v22, v{t9}, 11, v{t8}\nv_lshlrev_b32 v{t7}, 1, v{t7}\nv_xor_b32 v{t7}, v{t7}, v{t6}\nv_lshl_add_u32 v22, v{t7}, 4, v22')
    a(f's_mov_b32 s43, 12288\nv_mul_u32_u24 v23, s43, v{t9}\nv_add_u32 v23, v23, v{t8}\nv_lshl_add_u32 v23, v{t6}, 4, v23\nv_xor_b32 v24, 32, v23')
    a(f'v_lshlrev_b32 v{t8}, 10, v{t4}\nv_lshl_add_u32 v{t8}, v{t5}, 6, v{t8}\nv_lshl_add_u32 v{t8}, v{t6}, 3, v{t8}\nv_and_b32 v{t7}, 1, v{t4}\nv_lshl_add_u32 v{t8}, v{t7}, 5, v{t8}')
    a(f's_lshl_b32 s3, s48, 8\ns_add_u32 s3, s3, {QB}\nv_add_u32 v25, s3, v{t8}\nv_xor_b32 v26, 32, v25')
    a(f'v_lshlrev_b32 v27, 4, v{t4}\ns_lshl_b32 s3, s48, 9\ns_add_u32 s3, s3, {HB}\nv_add_u32 v31, s3, v27\nv_lshlrev_b32 v30, 3, v2\nv_add_u32 v30, s3, v30')
    a(f'v_mov_b32 v{t7}, 0x7ff00000\nv_cmp_eq_u32 vcc, 0, v{t3}\nv_cndmask_b32 v27, v{t7}, v27, vcc')
    a('s_lshr_b32 s58, s2, 4\ns_and_b32 s59, s2, 15')
    a(f's_mul_i32 s60, s58, {64*7168}\ns_mul_i32 s3, s48, {32*7168}\ns_add_u32 s60, s60, s3\ns_mul_i32 s3, s59, 448\ns_add_u32 s60, s60, s3')
    a(f's_lshl_b32 s61, s59, 4\ns_add_u32 s61, s61, s58\ns_lshl_b32 s61, s61, 1\ns_add_u32 s61, s61, s48\ns_mul_i32 s61, s61, 14336')
    a(f's_lshr_b32 s3, s2, 3\ns_lshl_b32 s3, s3, 1\ns_add_u32 s3, s3, s48\ns_mul_i32 s3, s3, {n1}\ns_and_b32 s43, s2, 7')
    a(f's_lshl_b32 s62, s3, 13\ns_lshl_b32 s63, s43, 8\ns_add_u32 s62, s62, s63\ns_mul_i32 s63, s43, {32*S1}\ns_add_u32 s63, s63, s3\ns_lshl_b32 s63, s63, 10')
    if common.K6MAP: a(f's_lshr_b32 s3, s2, 6\ns_mul_i32 s3, s3, {(14-n1)*131072}\ns_add_u32 s62, s62, s3')
    a(f's_lshl_b32 s43, s58, 1\ns_add_u32 s43, s43, s48\ns_mul_i32 s3, s43, {n2}')
    a(f's_lshl_b32 s64, s3, 14\ns_lshl_b32 s65, s59, 7\ns_add_u32 s64, s64, s65')
    if common.K6MAP: a(f's_lshr_b32 s65, s43, 3\ns_add_u32 s65, s65, 1\ns_mul_i32 s65, s65, {n1*131072}\ns_add_u32 s64, s64, s65')
    else: a(f's_add_u32 s64, s64, {2*KA1*2048}')
    a(f's_mul_i32 s65, s59, {8*S2}\ns_add_u32 s65, s65, s3\ns_lshl_b32 s65, s65, 10\ns_add_u32 s65, s65, {16*S1*16384}')
    a(f's_lshl_b32 s66, s43, 16\ns_lshl_b32 s3, s59, 7\ns_add_u32 s66, s66, s3\ns_lshl_b32 s67, s59, 5\ns_add_u32 s67, s67, s43\ns_lshl_b32 s67, s67, 12')
    a(f's_lshr_b32 s58, s2, 6\ns_and_b32 s59, s2, 63\ns_lshl_b32 s3, s58, 1\ns_add_u32 s3, s3, s48\ns_mul_i32 s68, s3, {128*12288}\ns_lshl_b32 s3, s59, 7\ns_add_u32 s68, s68, s3\ns_add_u32 s68, s68, 4096')
    a(f's_lshl_b32 s69, s48, 14\ns_add_u32 s69, s69, {QB}')
    a(f's_mul_i32 s51, s58, {6144*4}\ns_lshl_b32 s3, s59, 8\ns_add_u32 s51, s51, s3\ns_lshl_b32 s3, s48, 7\ns_add_u32 s51, s51, s3\ns_add_u32 s51, s51, 8192')
    srd_in(a, 24, 56, 'wo'); srd_ws(a, 32, 6, 'W2T'); srd_in(a, 72, 10, 'wmod'); srd_ws(a, 80, 6, 'MODP'); srd_in(a, 20, 54, 'w2'); srd_ws(a, 76, 6, 'WOT')
    stamp(a, 19, 1)
    a('s_waitcnt vmcnt(0)\ns_barrier')
    def gs(st):
        b = 32 + 16*(st & 1)
        a(f'ds_read_b128 v[{b}:{b+3}], v3 offset:{4096+256*st}\nds_read_b128 v[{b+4}:{b+7}], v3 offset:{4096+256*st+16}')
        a(f'ds_read_b128 v[{b+8}:{b+11}], v3 offset:{256*st}\nds_read_b128 v[{b+12}:{b+15}], v3 offset:{256*st+16}')
    def hstage(st, wait):
        b = 32 + 16*(st & 1)
        for j in range(2):
            for r in range(4): unpk(a, TT+8*j+2*r, TT+8*j+2*r+1, xr(st, j)+r)
        if wait: a(wait)
        for j in range(2):
            for r in range(8): a(f'v_fma_f32 v{TT+8*j+r}, v{TT+8*j+r}, v{b+r}, v{b+8+r}')
            for r in range(4): a(f'v_cvt_pk_bf16_f32 v{xr(st,j)+r}, v{TT+8*j+2*r}, v{TT+8*j+2*r+1}')
            a(f'ds_write_b128 v4, v[{xr(st,j)}:{xr(st,j)+3}] offset:{(st % 3)*8192 + 128*j}')
    gs(0); gs(1); hstage(0, 's_waitcnt lgkmcnt(4)'); gs(2); hstage(1, 's_waitcnt lgkmcnt(6)'); gs(3); hstage(2, 's_waitcnt lgkmcnt(6)')
    a('s_waitcnt lgkmcnt(0)\ns_barrier')
    for i in range(1, 16):
        a(f's_waitcnt vmcnt({4*max(0, min(i+2, 15) - max(i, 3))}) lgkmcnt(0)\ns_barrier')
        if i + 3 <= 15: wq_issue(i+3)
        if i + 2 <= 15:
            if i + 3 <= 15: gs(i+3)
            hstage(i+2, None)
    PF = a.lab('pf')
    a(f's_cmp_ge_u32 s42, 2\ns_cbranch_scc1 {PF}')
    srd_ws(a, 28, 6, 'KV')
    a('s_lshl_b32 s46, s42, 13\ns_add_u32 s46, s46, 32768\ns_mov_b32 s47, s46')
    KL = a.lab('kvl')
    a(f's_mov_b32 s41, 17\n{KL}:')
    a('s_waitcnt vmcnt(8)\ns_barrier')
    for g_ in range(2):
        a(f's_add_u32 m0, s47, {4096*g_}')
        for i in range(4): a(f'buffer_load_dwordx4 v11, s[28:31], s46 offen offset:{1024*i} sc1 lds')
        a(f's_add_u32 s46, s46, {4096 if g_ == 0 else 12288}')
    a('s_add_u32 s47, s47, 16384\ns_and_b32 s47, s47, 0xffff')
    a(f's_sub_u32 s41, s41, 1\ns_cmp_lg_u32 s41, 0\ns_cbranch_scc1 {KL}')
    a('s_waitcnt vmcnt(0)')
    stamp(a, 2, 1)
    a('s_endpgm')
    a(f'{PF}:')
    srd_in(a, 16, 52, 'w1'); srd_ws(a, 28, 6, 'W1T')
    a(f's_mov_b32 s50, {f32(-LOG2E)}')
    for j in range(2): unpk(a, 32+2*j, 33+2*j, j)
    for j in range(4): a(f'v_mul_f32 v{36+j}, s50, v{32+j}')
    for j in range(4): a(f'v_exp_f32 v{36+j}, v{36+j}')
    for j in range(4): a(f'v_add_f32 v{36+j}, 1.0, v{36+j}')
    for j in range(4): a(f'v_rcp_f32 v{36+j}, v{36+j}')
    for j in range(4): a(f'v_mul_f32 v{32+j}, v{32+j}, v{36+j}')
    a('v_cvt_pk_bf16_f32 v0, v32, v33\nv_cvt_pk_bf16_f32 v1, v34, v35')
    for j in range(pf_delay): a('s_barrier')
    RG = 32; BF = 96
    a('ds_write_b64 v30, v[0:1]')
    for kb in range(8): a(f'ds_read_b128 v[{BF+4*kb}:{BF+4*kb+3}], v31 offset:{64*kb}')
    units = []
    for u in range(4): units.append((24, 22, 66, 16384, 76, 67))
    for u in range(14): units.append((16, 12 + u % 7, 60, 16*7168 if u == 6 else 0, 28, 61))
    for u in range(n1): units.append((20, 20 + (u & 1), 62, 8192, 32, 63))
    for u in range(n2): units.append((20, 22, 64, 16384, 32, 65))
    nb = pf_delay
    assert pf_delay >= 1
    L = lambda i: 6 if 0 <= i < 8 else 0
    for i in range(11):
        if 2 <= i < 10:
            b = i - 2
            a(f's_waitcnt vmcnt({(4 if i >= 3 else 0) + L(i-1)})')
            for j in range(4):
                sr, vo, ss, sadd, dr, dsr = units[4*b + j]; r = RG + 16*(b % 3) + 4*j
                a(f'buffer_store_dwordx4 v[{r}:{r+3}], v11, s[{dr}:{dr+3}], s{dsr} offen{rst}\ns_add_u32 s{dsr}, s{dsr}, 1024')
        if i < 8:
            for j in range(2):
                a(f's_add_u32 m0, s69, {(2*i+j)*1024}\nbuffer_load_dwordx4 v{23+j}, s[72:75], s68 offen lds\ns_add_u32 s68, s68, {8*12288}')
            for j in range(4):
                sr, vo, ss, sadd, dr, dsr = units[4*i + j]; r = RG + 16*(i % 3) + 4*j
                a(f'buffer_load_dwordx4 v[{r}:{r+3}], v{vo}, s[{sr}:{sr+3}], s{ss} offen')
                if sadd: a(f's_add_u32 s{ss}, s{ss}, {sadd}')
        if i < 10: a('s_barrier'); nb += 1
    assert nb <= 17
    if hprio: a(f's_setprio {hprio}')
    AF = 128; DD = 192
    for kb in range(8):
        for nt in range(2):
            r = AF + 8*kb + 4*nt
            for h in range(2): a(f'ds_read_b64_tr_b16 v[{r+2*h}:{r+2*h+1}], v{25+nt} offset:{kb*4096 + h*512}')
    for kb in range(8):
        a(f's_waitcnt lgkmcnt({min(15, 28-4*kb)})')
        for nt in range(2):
            r = AF + 8*kb + 4*nt
            a(f'v_mfma_f32_16x16x32_bf16 v[{DD+4*nt}:{DD+4*nt+3}], v[{r}:{r+3}], v[{BF+4*kb}:{BF+4*kb+3}], ' + (f'v[{DD+4*nt}:{DD+4*nt+3}]' if kb else '0'))
    for nt in range(2): a(f'buffer_store_dwordx4 v[{DD+4*nt}:{DD+4*nt+3}], v27, s[80:83], s51 offen offset:{64*nt}')
    a('s_waitcnt vmcnt(0)')
    stamp(a, 2, 1)
    a(f'{end}:\ns_endpgm')
    return k
```

```python
import sys, os
sys.path.insert(0, os.path.dirname(__file__))
import common
from common import *
def build(path, stamps=False, verbose=False, opts=None):
    common.STAMPS = stamps
    common.QL = (opts or {}).get('ql', 0)
    common.K6MAP = (opts or {}).get('k6map', 1)
    common.ST = (opts or {}).get('st', '')
    import k12, k3, k3f, gemm
    opts = opts or {}
    front = [k3f.k3f(**opts.get('k3', {}))] if opts.get('fuse', 1) else [k12.k1(**opts.get('k1', {})), k12.k2(**opts.get('k2', {})), k3.k3(**opts.get('k3', {}))]
    ks = front + [gemm.k4(**opts.get('k4', {})), gemm.k5(**opts.get('k5', {})), gemm.k6(**opts.get('k6', {}))]
    ref = open(f'cdna_kernels/{NAME}.s.ref').read().split('\n')
    hdr = [l for l in ref if l.startswith(';') and 'offset' in l or l.startswith('; Kernarg')]
    out = hdr[:]
    for k in ks: out.append(f'; @launch kernel={k.name} grid=({k.grid},1,1) block=({k.block},1,1) lds={k.lds}')
    out.append('.amdgcn_target "amdgcn-amd-amdhsa--gfx950"\n.text')
    for k in ks: out.append(k.text(verbose))
    out.append('.section .rodata,"a"')
    for k in ks: out.append(k.desc())
    open(path, 'w').write('\n'.join(out))
if __name__ == '__main__':
    args = [x for x in sys.argv[1:] if x.endswith('.s')]
    path = args[0] if args else f'cdna_kernels/{NAME}.s'
    opts = {}
    for x in sys.argv[1:]:
        if x.startswith('{'): opts = eval(x)
    build(path, stamps='stamps' in sys.argv, verbose='-v' in sys.argv, opts=opts)
```

```python
from asm import Asm
NAME = 'adaLN_cond__grouped_kv_mqa__dense_activation_relu__prompt'
KA = dict(x=0, wq=8, wk=16, wv=24, wo=32, bx=40, w1=48, w2=56, c=64, wmod=72, out=80, dbg=88, ws=96)
SZ = dict(x=4194304, wq=2097152, wk=65536, wv=65536, wo=2097152, w1=7340032, w2=7340032, c=2048, wmod=12582912, out=4194304)
WS = dict(
    MODP=(0x000000, 4*6144*4),
    ST1=(0x018000, 2048*8),
    SC=(0x01C000, 2048),
    KV=(0x020000, 262144),
    FLAG=(0x060000, 0x8000),
    HO=(0x070000, 0x9100),
    STATS=(0x080000, 2048*32*8),
    H=(0x100000, 4194304),
    O=(0x500000, 4194304),
    X1=(0x900000, 4194304),
    A2=(0xD00000, 4194304),
    F=(0x1100000, 2048*3584*2),
    WQT=(0x2000000, 2097152),
    WOT=(0x2200000, 2097152),
    W1T=(0x2400000, 7340032),
    W2T=(0x2B00000, 7340032),
    UTP=(0x3200000, 16*2*16*224*4),
    XCH=(0x3300000, 256*32768),
    STAMP=(0x8000000, 0x100000),
)
NSPL = 4
KA1, KC2 = 1408, 768
LOG2E = 1.4426950408889634
import struct
def f32(x): return '0x%08x' % struct.unpack('<I', struct.pack('<f', x))[0]

def ldptr(a, s, name):
    a(f's_load_dwordx2 s[{s}:{s+1}], s[0:1], {KA[name]}')
def srd_in(a, d, s, name):
    a(f's_mov_b32 s{d}, s{s}\ns_mov_b32 s{d+1}, s{s+1}\ns_mov_b32 s{d+2}, {SZ[name]}\ns_mov_b32 s{d+3}, 0x20000')
def srd_ws(a, d, s, reg):
    off, size = WS[reg]
    a(f's_add_u32 s{d}, s{s}, {off}\ns_addc_u32 s{d+1}, s{s+1}, 0\ns_mov_b32 s{d+2}, {size}\ns_mov_b32 s{d+3}, 0x20000')
def rbf2(a, x, y, t):
    a(f'v_cvt_pk_bf16_f32 v{t}, v{x}, v{y}\nv_lshlrev_b32 v{x}, 16, v{t}\nv_and_b32 v{y}, 0xffff0000, v{t}')
def unpk(a, lo, hi, src):
    a(f'v_lshlrev_b32 v{lo}, 16, v{src}\nv_and_b32 v{hi}, 0xffff0000, v{src}')

class Kern:
    def __init__(self, name, grid, block, lds, vgpr, sgpr=96, agpr=0):
        self.name = name; self.grid = grid; self.block = block; self.lds = lds; self.vgpr = vgpr; self.sgpr = sgpr; self.agpr = agpr
        self.a = Asm(name[:2])
    def loader_first(self, ld, end):
        L = self.a.lines
        i0 = L.index(f'{ld}:'); i1 = L.index(f'{end}:')
        b = L.index(f's_cbranch_scc1 {ld}')
        cons = self.a.lab('cons')
        blk = L[i0+1:i1]
        new = L[:b] + [f's_cbranch_scc0 {cons}'] + blk + ['s_endpgm', f'{cons}:'] + L[b+1:i0] + L[i1:]
        self.a.lines = new
    def text(self, verbose):
        body = self.a.finalize(verbose)
        return f'.p2align 8\n{self.name}:\n{body}\n'
    def desc(self):
        acc = (self.vgpr + 3) // 4 * 4
        return f""".p2align 6
.amdhsa_kernel {self.name}
  .amdhsa_next_free_vgpr {acc + self.agpr if self.agpr else self.vgpr}
  .amdhsa_next_free_sgpr {self.sgpr}
  .amdhsa_accum_offset {acc}
  .amdhsa_group_segment_fixed_size 0
  .amdhsa_kernarg_size 104
  .amdhsa_user_sgpr_count 2
  .amdhsa_user_sgpr_kernarg_segment_ptr 1
  .amdhsa_system_sgpr_workgroup_id_x 1
.end_amdhsa_kernel
"""

STAMPS = False
def stamp(a, kidx, which, vtmp=(250, 251, 252), stmp=84, cyc=False):
    if not STAMPS: return
    s = stmp
    off = WS['STAMP'][0] + kidx * 0x10000 + which * 8
    a(f's_memtime s[{s+4}:{s+5}]' if cyc else f's_memrealtime s[{s+4}:{s+5}]')
    a(f's_load_dwordx2 s[{s+6}:{s+7}], s[0:1], {KA["ws"]}')
    a('s_waitcnt lgkmcnt(0)')
    a(f's_add_u32 s{s}, s{s+6}, {off}\ns_addc_u32 s{s+1}, s{s+7}, 0\ns_mov_b32 s{s+2}, 0x10000\ns_mov_b32 s{s+3}, 0x20000')
    a(f's_lshl_b32 s{s+8}, s2, 7\ns_lshl_b32 s{s+9}, s95, 4\ns_add_u32 s{s+8}, s{s+8}, s{s+9}')
    a(f'v_mov_b32 v{vtmp[0]}, s{s+4}\nv_mov_b32 v{vtmp[1]}, s{s+5}\nv_mov_b32 v{vtmp[2]}, 0')
    a(f'buffer_store_dwordx2 v[{vtmp[0]}:{vtmp[1]}], v{vtmp[2]}, s[{s}:{s+3}], s{s+8} offen')

def waveid(a):
    a('v_lshrrev_b32 v1, 6, v0\nv_readfirstlane_b32 s95, v1')

def prefetch(a, nwg, swg, items, sbase=8, vdst=8):
    a(f'v_lshlrev_b32 v1, 4, v0')
    for i, name in enumerate(items): ldptr(a, sbase + 4 + 2*i, name)
    a(f's_lshl_b32 s{swg}, s{swg}, 12')
    a('s_waitcnt lgkmcnt(0)')
    for i, name in enumerate(items):
        srd_in(a, sbase, sbase + 4 + 2*i, name)
        n = -(-SZ[name] // (nwg * 4096))
        a(f's_mov_b32 s3, s{swg}')
        if n <= 3:
            for j in range(n):
                a(f'buffer_load_dwordx4 v[{vdst}:{vdst+3}], v1, s[{sbase}:{sbase+3}], s3 offen')
                if j < n-1: a(f's_add_u32 s3, s3, {nwg*4096}')
        else:
            L = a.lab('pf')
            a(f'{L}:')
            a(f'buffer_load_dwordx4 v[{vdst}:{vdst+3}], v1, s[{sbase}:{sbase+3}], s3 offen')
            a(f's_add_u32 s3, s3, {nwg*4096}\ns_cmp_lt_u32 s3, {SZ[name]}\ns_cbranch_scc1 {L}')
    a('s_waitcnt vmcnt(0)')

ST = ''

QL = 0

K6MAP = 1

class LS:
    def __init__(self, a): self.a = a; self.pend = None; self.k = 0
    def __call__(self, n, sync=False):
        if not STAMPS: return
        a = self.a
        if sync:
            a(f's_memrealtime s[90:91]\ns_waitcnt lgkmcnt(0)\nv_writelane_b32 v247, s90, {n}'); return
        r = 84 + 2*(self.k % 3); self.k += 1
        a(f's_memrealtime s[{r}:{r+1}]')
        if self.pend: a(f'v_writelane_b32 v247, s{self.pend[0]}, {self.pend[1]}')
        self.pend = (r, n)
    def flush(self):
        if not STAMPS: return
        a = self.a
        a('s_waitcnt lgkmcnt(0)')
        if self.pend: a(f'v_writelane_b32 v247, s{self.pend[0]}, {self.pend[1]}')
        self.pend = None
        a(f's_add_u32 s84, s6, {0x9100000}\ns_addc_u32 s85, s7, 0\ns_mov_b32 s86, 0x80000\ns_mov_b32 s87, 0x20000')
        a('s_lshl_b32 s88, s2, 11\ns_lshl_b32 s89, s95, 8\ns_add_u32 s88, s88, s89\nv_mbcnt_lo_u32_b32 v246, -1, 0\nv_mbcnt_hi_u32_b32 v246, -1, v246\nv_lshlrev_b32 v246, 2, v246\nbuffer_store_dword v247, v246, s[84:87], s88 offen')
```

```python
from common import *
import common
from gemm import lin_copy

OFF = 60.0
def k3f(order=(0,1,2,4,3,5), pf_delay=1, prio=1, rdpos=(0,1,2,3), waitpos=5, waitpos2=1, barpos=4, rst=' sc1', hprio=2, pflag=5, ppoll=10, pchk=12, pk=1, rot=1, hp0=3):
    QB = 65536; HB = 131072; DB = 155648
    SCR = HB; STT = HB + 1024
    KVF, TAG = 0x8000, 0x9000
    k = Kern('k3_attn_kernel', 256, 512, 163840, 208 if not common.STAMPS else 256, sgpr=100)
    a = k.a
    end = a.lab('end'); ld = a.lab('loader')
    a(f's_cmp_ge_u32 s2, 256\ns_cbranch_scc1 {end}')
    ldptr(a, 6, 'ws'); ldptr(a, 4, 'x'); ldptr(a, 8, 'c'); ldptr(a, 10, 'wmod'); ldptr(a, 70, 'wq')
    waveid(a); stamp(a, 2, 0)
    a('s_and_b32 s14, s2, 7\ns_lshr_b32 s15, s2, 3\ns_and_b32 s13, s15, 7\ns_lshl_b32 s12, s14, 2\ns_lshr_b32 s3, s15, 3\ns_add_u32 s12, s12, s3')
    if rot: a('s_lshl_b32 s94, s3, 1\ns_add_u32 s94, s94, s13\ns_lshl_b32 s94, s94, 29')
    else: a('s_mov_b32 s94, 0')
    a('v_and_b32 v2, 63, v0\ns_mov_b32 s96, 0xffff0000')
    def unp(lo, hi, src): a(f'v_lshlrev_b32 v{lo}, 16, v{src}\nv_and_b32 v{hi}, s96, v{src}')
    def rnd(x, y, t): a(f'v_cvt_pk_bf16_f32 v{t}, v{x}, v{y}'); unp(x, y, t)
    def nrm(t, r):
        if pk: a(f'v_pk_fma_f32 v[{t}:{t+1}], v[{t}:{t+1}], v[{r}:{r+1}], v[{r}:{r+1}] op_sel:[0,0,1] op_sel_hi:[1,0,1]')
        else: a(f'v_fma_f32 v{t}, v{t}, v{r}, v{r+1}\nv_fma_f32 v{t+1}, v{t+1}, v{r}, v{r+1}')
    def mad8(u, g_, s_):
        if pk:
            for j in range(0, 8, 2): a(f'v_pk_fma_f32 v[{u+j}:{u+j+1}], v[{u+j}:{u+j+1}], v[{g_+j}:{g_+j+1}], v[{s_+j}:{s_+j+1}]')
        else:
            for j in range(8): a(f'v_fma_f32 v{u+j}, v{u+j}, v{g_+j}, v{s_+j}')
    a(f's_cmp_ge_u32 s95, 4\ns_cbranch_scc1 {ld}')
    S = [16, 32, 48, 64]; O = [80, 96]; NM = [112, 128]; Qr = [144, 152]; Kb = [160, 168]; Vb = [176, 184]; Lr = [192, 196]; ONE = 200
    IDX = 12
    if prio: a(f's_setprio {prio}')
    WM, ACCG, X = 32, 48, 64
    a('v_lshrrev_b32 v4, 2, v0\ns_mov_b32 s3, 49152\nv_mul_u32_u24 v3, s3, v4\nv_and_b32 v11, 3, v0\nv_lshl_add_u32 v3, v11, 4, v3\nv_lshlrev_b32 v4, 3, v4\nv_mov_b32 v8, 0')
    a('s_and_b32 s40, s14, 1\ns_lshl_b32 s40, s40, 5\ns_add_u32 s40, s40, s15\ns_lshr_b32 s41, s14, 1')
    a(f's_mul_i32 s42, s41, {256*12288}\ns_lshl_b32 s3, s40, 6\ns_add_u32 s42, s42, s3\ns_lshl_b32 s43, s41, 9')
    a('s_waitcnt lgkmcnt(0)')
    srd_in(a, 16, 10, 'wmod'); srd_in(a, 20, 8, 'c'); srd_ws(a, 32, 6, 'HO')
    for j in range(4):
        a(f'buffer_load_dwordx4 v[{WM+4*j}:{WM+4*j+3}], v3, s[16:19], s42 offen')
        if j == 0: a(f'buffer_load_dwordx2 v[16:17], v4, s[20:23], s43 offen\ns_mov_b32 s3, {TAG}\nbuffer_load_dword v14, v8, s[32:35], s3 offen sc1')
        if j < 3: a('s_add_u32 s42, s42, 12288')
    a('v_and_b32 v6, 15, v2\nv_lshrrev_b32 v7, 4, v2')
    a('s_lshl_b32 s44, s12, 2\ns_lshr_b32 s3, s13, 1\ns_add_u32 s44, s44, s3')
    srd_in(a, 20, 4, 'x')
    a('v_lshlrev_b32 v9, 4, v2')
    srd_ws(a, 24, 6, 'O'); srd_ws(a, 28, 6, 'KV'); srd_ws(a, 36, 6, 'FLAG')
    a('v_lshrrev_b32 v3, 5, v2\nv_lshlrev_b32 v10, 11, v3\nv_lshrrev_b32 v4, 2, v2\nv_and_b32 v4, 3, v4\nv_lshl_add_u32 v10, v4, 7, v10')
    a('v_lshrrev_b32 v5, 1, v4\ns_and_b32 s3, s95, 1\nv_xor_b32 v5, s3, v5\nv_lshl_add_u32 v10, v5, 6, v10')
    a('v_and_b32 v5, 1, v7\nv_lshl_add_u32 v10, v5, 5, v10\nv_lshl_add_u32 v10, v11, 3, v10')
    a(f's_lshr_b32 s3, s95, 1\ns_lshl_b32 s3, s3, 9\ns_add_u32 s3, s3, {QB}\nv_add_u32 v10, s3, v10')
    a('v_lshrrev_b32 v1, 2, v2\nv_lshlrev_b32 v1, 11, v1\nv_lshl_add_u32 v1, v11, 4, v1\nv_lshlrev_b32 v0, 4, v6\nv_lshl_add_u32 v0, v7, 2, v0')
    a('v_lshl_add_u32 v15, v7, 3, v4\nv_lshlrev_b32 v15, 6, v15\nv_lshl_add_u32 v15, v11, 3, v15\nv_lshl_add_u32 v15, v5, 5, v15')
    a('s_lshl_b32 s3, s95, 14\nv_add_u32 v15, s3, v15\nv_xor_b32 v204, 32, v15\nv_add_u32 v205, s3, v9')
    a('v_lshlrev_b32 v13, 15, v5\nv_lshl_add_u32 v13, v3, 8, v13\nv_lshl_add_u32 v13, v6, 4, v13')
    a('s_lshl_b32 s46, s12, 7\ns_lshl_b32 s3, s13, 2\ns_add_u32 s46, s46, s3\ns_add_u32 s46, s46, s95\ns_lshl_b32 s46, s46, 10')
    a('s_and_b32 s48, s13, 1\ns_cmp_eq_u32 s48, 0\ns_cselect_b64 vcc, -1, 0')
    a('v_cndmask_b32 v206, v3, v5, vcc\nv_cndmask_b32 v207, v5, v3, vcc\nv_lshlrev_b32 v206, 9, v206\nv_lshl_add_u32 v206, v207, 3, v206\nv_lshl_add_u32 v206, v6, 4, v206')
    a('s_and_b32 s3, s44, 1\ns_cmp_eq_u32 s48, 0\ns_cselect_b32 s45, s95, s3\ns_cselect_b32 s47, s3, s95')
    a('s_lshl_b32 s45, s45, 10\ns_lshl_b32 s47, s47, 8\ns_add_u32 s45, s45, s47\ns_lshl_b32 s47, s48, 11\ns_add_u32 s45, s45, s47')
    a('s_lshr_b32 s47, s44, 1\ns_lshl_b32 s47, s47, 12\ns_add_u32 s45, s45, s47')
    a(f's_lshr_b32 s3, s13, 1\ns_lshl_b32 s3, s3, 7\ns_add_u32 s3, s3, {STT}\nv_lshlrev_b32 v207, 3, v6\nv_add_u32 v207, s3, v207')
    a(f's_lshl_b32 s3, s95, 10\ns_add_u32 s3, s3, {DB}\nv_lshlrev_b32 v8, 5, v7\nv_add_u32 v8, s3, v8')
    a(f'v_lshlrev_b32 v11, 5, v11\nv_lshl_add_u32 v11, v7, 3, v11\ns_lshl_b32 s3, s95, 7\ns_add_u32 s3, s3, {SCR}\nv_add_u32 v11, s3, v11')
    a(f'v_and_b32 v5, 7, v2\nv_mov_b32 v4, 0x3f803f80\nv_cmp_eq_u32 vcc, 0, v5\nv_cmp_eq_u32 s[52:53], 4, v5\nv_mov_b32 v{IDX}, 0xdddddddd\nv_cndmask_b32 v{ONE}, 0, v4, vcc\nv_cndmask_b32 v{ONE+1}, 0, v4, vcc')
    a(f'v_cndmask_b32 v{ONE+2}, 0, v4, s[52:53]\nv_cndmask_b32 v{ONE+3}, 0, v4, s[52:53]')
    a(f'v_and_b32 v4, 31, v2\nv_xor_b32 v4, v4, v3\nv_lshlrev_b32 v4, 4, v4\nv_lshl_add_u32 v4, v3, 9, v4\nv_add_u32 v4, {HB}, v4')
    a('v_xor_b32 v5, 32, v4\nv_xor_b32 v6, 64, v4\nv_xor_b32 v7, 0x60, v4')
    a(f's_mov_b32 s50, {f32(-LOG2E)}\ns_mov_b32 s51, 0x9e3779b1')
    a('s_waitcnt vmcnt(3)')
    a('v_mul_lo_u32 v14, v14, s51\nv_add_u32 v14, 0x7f4a7c15, v14')
    for j in range(2): unp(18+2*j, 19+2*j, 16+j)
    for j in range(4): a(f'v_mul_f32 v{22+j}, s50, v{18+j}')
    for j in range(4): a(f'v_exp_f32 v{22+j}, v{22+j}')
    for j in range(4): a(f'v_add_f32 v{22+j}, 1.0, v{22+j}')
    for j in range(4): a(f'v_rcp_f32 v{22+j}, v{22+j}')
    for j in range(4): a(f'v_mul_f32 v{18+j}, v{18+j}, v{22+j}')
    for j in range(2): rnd(18+2*j, 19+2*j, 22+j)
    for j in range(4):
        if j: a(f's_waitcnt vmcnt({3-j})')
        for r in range(4): unp(56+2*r, 57+2*r, WM+4*j+r)
        for r in range(8): a(f'v_mul_f32 v{ACCG+r}, v{56+r}, v{18+j}' if j == 0 else f'v_fmac_f32 v{ACCG+r}, v{56+r}, v{18+j}')
    G = ACCG
    for r in range(4): a(f'v_permlane32_swap_b32 v{G+r}, v{G+4+r}')
    for r in range(4): a(f'v_add_f32 v{G+r}, v{G+r}, v{G+4+r}')
    a(f's_lshl_b32 s3, s95, 2\ns_add_u32 s3, s3, {SCR+512}\nv_mov_b32 v16, s3')
    for r in range(2): a(f'v_permlane16_swap_b32 v{G+r}, v{G+2+r}')
    for r in range(2): a(f'v_add_f32 v{G+r}, v{G+r}, v{G+2+r}')
    for rr in (8, 4):
        for r in range(2): a(f'v_add_f32_dpp v{G+r}, v{G+r}, v{G+r} row_ror:{rr} row_mask:0xf bank_mask:0xf')
    a(f's_mov_b32 exec_lo, 0x000f000f\ns_mov_b32 exec_hi, 0x000f000f\nds_write_b64 v11, v[{G}:{G+1}]\ns_mov_b64 exec, 1\nds_write_b32 v16, v14\ns_mov_b64 exec, -1')
    np_ = a.lab('np'); pj = a.lab('pj'); sp = a.lab('sp'); so = a.lab('so')
    a(f's_cmp_lg_u32 s95, 0\ns_cbranch_scc1 {np_}')
    a(f'v_mov_b32 v16, {SCR+512}\nv_and_b32 v17, 0x70, v9\nv_add_u32 v17, {SCR}, v17\ns_mov_b64 exec, 0xff')
    a(f's_lshl_b32 s42, s41, 13\ns_lshl_b32 s3, s40, 7\ns_add_u32 s42, s42, s3\ns_mov_b32 s52, 0x100000')
    a('s_mov_b32 s53, 0x07060503\ns_mov_b32 s54, 0x07060502\ns_mov_b32 s55, 0x07060501')
    a(f'{sp}:\nds_read_b128 v[20:23], v16')
    for w in range(4): a(f'ds_read_b128 v[{32+4*w}:{35+4*w}], v17 offset:{128*w}')
    a('s_waitcnt lgkmcnt(4)\nv_xor_b32 v21, v21, v14\nv_xor_b32 v22, v22, v14\nv_xor_b32 v23, v23, v14\nv_or3_b32 v21, v21, v22, v23\nv_cmp_eq_u32 vcc, 0, v21')
    a(f's_waitcnt lgkmcnt(0)\ns_cbranch_vccnz {so}\ns_sub_u32 s52, s52, 1\ns_cbranch_scc0 {sp}\n{so}:')
    for j in range(4): a(f'v_add_f32 v{32+j}, v{32+j}, v{36+j}\nv_add_f32 v{40+j}, v{40+j}, v{44+j}')
    for j in (3, 0, 1, 2): a(f'v_add_f32 v{32+j}, v{32+j}, v{40+j}')
    for j in range(3): a(f'v_perm_b32 v{32+j}, v{32+j}, v35, s{53+j}')
    a('v_mov_b32 v35, v14')
    a(f'buffer_store_dwordx4 v[32:35], v9, s[32:35], s42 offen sc1\ns_mov_b64 exec, -1\ns_branch {pj}')
    a(f'{np_}:\nv_mov_b32 v18, 0\nv_and_b32 v17, 31, v2\nv_lshlrev_b32 v17, 2, v17\ns_lshl_b32 s3, s2, 7\nbuffer_store_dword v18, v17, s[36:39], s3 offen\n{pj}:')
    stamp(a, 17, 0)
    a('s_lshl_b32 s42, s44, 15\ns_lshl_b32 s43, s95, 30\ns_add_u32 s43, s43, s94')
    for s_ in range(8):
        if s_ % 2 == 0: a('s_lshr_b32 s3, s43, 21\ns_add_u32 s3, s3, s42\ns_add_u32 s43, s43, 0x10000000')
        a(f'buffer_load_dwordx4 v[{X+4*s_}:{X+4*s_+3}], v1, s[20:23], s3 offen offset:{64*(s_ % 2)}')
    a('s_barrier')
    a('ds_read_b64 v[20:21], v207')
    for s_ in range(8):
        a(f's_waitcnt vmcnt({7-s_})')
        for r in range(4): a(f'ds_bpermute_b32 v{X+4*s_+r}, v0, v{X+4*s_+r}')
    for r in range(32):
        t = 22 + 2*(r % 4)
        if r % 4 == 0: a(f's_waitcnt lgkmcnt({min(15, 28-r)})')
        unp(t, t+1, X+r); nrm(t, 20)
        a(f'v_cvt_pk_bf16_f32 v{X+r}, v{t}, v{t+1}')
    stamp(a, 17, 1)
    R = 96
    sw = a.lab('sw'); swo = a.lab('swo'); ng = a.lab('ng')
    a(f's_lshl_b32 s40, s95, 11\ns_add_u32 s41, s40, 8192\ns_add_u32 s42, s40, 16384\ns_add_u32 s43, s40, 24576\ns_mov_b32 s52, 0x100000')
    a('s_mov_b32 s53, 0x04000c0c\ns_mov_b32 s54, 0x0706000c\ns_lshr_b32 s55, s94, 20\ns_sub_u32 s55, s40, s55')
    a(f'v_add_u32 v16, s55, v9\nv_add_u32 v19, 1024, v16\nv_and_b32 v16, 0xfff, v16\nv_and_b32 v19, 0xfff, v19\ns_lshr_b32 s3, s95, 1\ns_lshl_b32 s3, s3, 12\ns_add_u32 s3, s3, {DB}')
    a('v_add_u32 v16, s3, v16\nv_add_u32 v19, s3, v19')
    a(f'{sw}:')
    for u in range(2):
        for s_ in range(4): a(f'buffer_load_dwordx4 v[{R+16*u+4*s_}:{R+16*u+4*s_+3}], v9, s[32:35], s{40+s_} offen offset:{1024*u} sc1')
    for u in range(2):
        b = R + 16*u
        for s_ in range(4):
            d = b + 4*s_
            a(f's_waitcnt vmcnt({7-4*u-s_})')
            if u == 0 and s_ == 0: a(f'v_xor_b32 v17, v{d+3}, v14')
            else: a(f'v_bitop3_b32 v17, v17, v{d+3}, v14 bitop3:0xf6')
            a(f'v_perm_b32 v{d+3}, v{d}, v{d+1}, s53\nv_perm_b32 v{d+3}, v{d+3}, v{d+2}, s54')
            if s_:
                for j in range(4): a(f'v_add_f32 v{b+j}, v{b+j}, v{d+j}')
    a(f'v_cmp_ne_u32 vcc, 0, v17\ns_cbranch_vccz {swo}')
    a(f's_sub_u32 s52, s52, 1\ns_cbranch_scc0 {sw}\n{swo}:')
    stamp(a, 18, 0)
    for u in range(2):
        for j in (0, 2): rnd(R+16*u+j, R+16*u+j+1, R+16*u+4+j)
    a(f's_cmp_lt_u32 s95, 2\ns_cbranch_scc1 {ng}')
    for u in range(2):
        for j in range(4): a(f'v_add_f32 v{R+16*u+j}, 1.0, v{R+16*u+j}')
    for u in range(2):
        for j in (0, 2): rnd(R+16*u+j, R+16*u+j+1, R+16*u+4+j)
    a(f'{ng}:\nds_write_b128 v16, v[{R}:{R+3}]\nds_write_b128 v19, v[{R+16}:{R+19}]')
    a('s_waitcnt lgkmcnt(0)\ns_barrier')
    stamp(a, 18, 1)
    U = 16; GS = 160; WF = 96
    def rd_gs(s):
        b = GS + 16*(s % 2)
        a(f'ds_read_b128 v[{b}:{b+3}], v8 offset:{4096+128*s}\nds_read_b128 v[{b+4}:{b+7}], v8 offset:{4096+128*s+16}')
        a(f'ds_read_b128 v[{b+8}:{b+11}], v8 offset:{128*s}\nds_read_b128 v[{b+12}:{b+15}], v8 offset:{128*s+16}')
    def rd_w(s):
        for ft in range(2):
            d = WF + 8*s + 4*ft
            a(f'ds_read_b64_tr_b16 v[{d}:{d+1}], v{(15, 204)[ft]} offset:{s*2048}\nds_read_b64_tr_b16 v[{d+2}:{d+3}], v{(15, 204)[ft]} offset:{s*2048+256}')
    vlab = a.lab('vpath'); join = a.lab('join')
    rd_gs(0)
    a(f's_cmp_eq_u32 s48, 1\ns_cbranch_scc1 {vlab}')
    KA_ = 24
    for half in range(2):
        if half == 1: a(f's_branch {join}\n{vlab}:')
        def mm(s):
            for ft in range(2):
                d = WF + 8*s + 4*ft; c = f'v[{KA_+4*ft}:{KA_+3+4*ft}]' if s else '0'
                A, B = (f'v[{d}:{d+3}]', f'v[{X+4*s}:{X+4*s+3}]')
                if half: A, B = B, A
                a(f'v_mfma_f32_16x16x32_bf16 v[{KA_+4*ft}:{KA_+3+4*ft}], {A}, {B}, {c}')
        for s in range(8):
            rd_w(s)
            if s < 7: rd_gs(s+1)
            for j in range(4): unp(U+2*j, U+2*j+1, X+4*s+j)
            a(f's_waitcnt lgkmcnt({8 if s < 7 else 4})')
            if s: mm(s-1)
            b = GS + 16*(s % 2)
            mad8(U, b, b+8)
            for j in range(4): a(f'v_cvt_pk_bf16_f32 v{X+4*s+j}, v{U+2*j}, v{U+2*j+1}')
        a('s_waitcnt lgkmcnt(0)')
        mm(7)
    a(f'{join}:')
    a(f'ds_write_b128 v205, v[{KA_}:{KA_+3}]\nds_write_b128 v205, v[{KA_+4}:{KA_+7}] offset:1024')
    a('s_lshl_b32 s3, s95, 10\nv_add_u32 v205, s3, v9')
    a('s_waitcnt lgkmcnt(0)\ns_barrier')
    stamp(a, 11, 0)
    ACC = [16, 32]; P = 48; Q = 160
    def reads(Rb, st, sub):
        out = []
        for i in range(2):
            ks = 2*sub + i; b = Rb + 12*i; wo = (st % 4)*16384 + ks*4096; ho = (st % 3)*8192 + ks*1024
            out += [f'ds_read_b64_tr_b16 v[{b}:{b+1}], v10 offset:{wo}', f'ds_read_b64_tr_b16 v[{b+2}:{b+3}], v10 offset:{wo+1024}',
                    f'ds_read_b128 v[{b+4}:{b+7}], v{4+ks} offset:{ho}', f'ds_read_b128 v[{b+8}:{b+11}], v{4+ks} offset:{ho+4096}']
        return out
    def mf(Rb, first=False):
        return [f'v_mfma_f32_32x32x16_bf16 v[{ACC[j]}:{ACC[j]+15}], v[{Rb+12*i}:{Rb+12*i+3}], v[{Rb+12*i+4+4*j}:{Rb+12*i+7+4*j}], ' + ('0' if first and i == 0 else f'v[{ACC[j]}:{ACC[j]+15}]')
                for i in range(2) for j in range(2)]
    def inter(m, r, extra=()):
        r = list(r) + list(extra); per = -(-len(r) // len(m))
        for x in m:
            a(x)
            for _ in range(per):
                if r: a(r.pop(0))
    for x in reads(P, 0, 0): a(x)
    nk = a.lab('nk')
    a(f's_cmp_ge_u32 s95, 2\ns_cbranch_scc1 {nk}')
    KR = 112
    for w in range(4): a(f'ds_read_b128 v[{KR+4*w}:{KR+3+4*w}], v205 offset:{16384*w}')
    a('s_waitcnt lgkmcnt(2)')
    for j in range(4): a(f'v_add_f32 v{KR+j}, v{KR+j}, v{KR+4+j}')
    a('s_waitcnt lgkmcnt(0)')
    for j in range(4): a(f'v_add_f32 v{KR+8+j}, v{KR+8+j}, v{KR+12+j}')
    for j in range(4): a(f'v_add_f32 v{KR+j}, v{KR+j}, v{KR+8+j}')
    a(f'v_cvt_pk_bf16_f32 v{KR}, v{KR}, v{KR+1}\nv_cvt_pk_bf16_f32 v{KR+1}, v{KR+2}, v{KR+3}')
    a(f'buffer_store_dwordx2 v[{KR}:{KR+1}], v206, s[28:31], s45 offen sc1\n{nk}:')
    zer = [f'v_mov_b32 v{O[0]+j}, 0' for j in range(32)] + [f'v_mov_b32 v{Lr[0]+j}, 0' for j in range(8)] + [f'v_mov_b32 v{Vb[1]+j}, 0' for j in range(8)]
    for st in range(16):
        a('s_waitcnt lgkmcnt(0)')
        inter(mf(P, st == 0), reads(Q, st, 1), zer[8*(st-1):8*st] if 1 <= st <= 6 else [])
        a('s_waitcnt lgkmcnt(0)')
        if st == 15: break
        if st + 1 == pflag: a('s_waitcnt vmcnt(0)')
        a('s_barrier')
        inter(mf(Q), reads(P, st+1, 0))
        if st + 1 == pflag:
            l = a.lab('nf')
            a(f's_cmp_lg_u32 s95, 0\ns_cbranch_scc1 {l}\ns_lshl_b32 s3, s2, 4\ns_add_u32 s3, s3, {KVF}\ns_mov_b64 exec, 1\nbuffer_store_dword v14, v9, s[32:35], s3 offen sc1\ns_mov_b64 exec, -1\n{l}:')
        pl = [f'buffer_load_dword v{204+j}, v9, s[32:35], s42 offen offset:{1024*j} sc1' for j in range(4)]
        if st + 1 == ppoll:
            l = a.lab('npl')
            a(f's_cmp_lt_u32 s95, 2\ns_cbranch_scc1 {l}\ns_mov_b32 s42, {KVF}')
            for x in pl: a(x)
            a(f'{l}:')
        if st + 1 == pchk:
            l = a.lab('nck'); p0 = a.lab('p0'); p1 = a.lab('p1'); nt = a.lab('nt')
            a(f's_cmp_lt_u32 s95, 2\ns_cbranch_scc1 {l}\ns_mov_b32 s52, 0x100000\n{p0}:\ns_waitcnt vmcnt(0)')
            a('v_xor_b32 v204, v204, v14\nv_xor_b32 v205, v205, v14\nv_xor_b32 v206, v206, v14\nv_xor_b32 v207, v207, v14\nv_or3_b32 v204, v204, v205, v206\nv_or_b32 v204, v204, v207')
            a(f'v_cmp_ne_u32 vcc, 0, v204\ns_cbranch_vccz {p1}')
            for x in pl: a(x)
            a(f's_sub_u32 s52, s52, 1\ns_cbranch_scc0 {p0}\n{p1}:')
            stamp(a, 20, 0)
            a('s_sub_u32 s42, s95, 2\ns_lshl_b32 s42, s42, 13')
            for c in range(2):
                for g_ in range(2):
                    a(f's_add_u32 m0, s42, {c*16384 + g_*4096}\ns_add_u32 s3, s42, {c*16384 + g_*4096}')
                    for i in range(4): a(f'buffer_load_dwordx4 v9, s[28:31], s3 offen offset:{1024*i} sc1 lds')
            a(f's_lshl_b32 s3, s2, 2\ns_add_u32 s3, s3, s95\ns_cmp_lg_u32 s3, 2\ns_cbranch_scc1 {l}\ns_mov_b32 s3, {TAG}\ns_mov_b64 exec, 1\nbuffer_store_dword v14, v9, s[32:35], s3 offen sc1\ns_mov_b64 exec, -1')
            a(f'{l}:')
    for x in mf(Q): a(x)
    stamp(a, 6, 0)
    for j in range(16): a(f'v_mov_b32 v{S[3]+j}, 0')
    a(f's_mov_b32 s44, {f32(LOG2E / 32**0.5)}')
    a('v_mov_b32 v10, v9\nv_add_u32 v11, 16384, v9\ns_mov_b32 s40, 16384')
    for q in range(2):
        for j in range(16): a(f'v_mul_f32 v{ACC[q]+j}, s44, v{ACC[q]+j}')
        for j in range(8): a(f'v_cvt_pk_bf16_f32 v{Qr[q]+j}, v{ACC[q]+2*j}, v{ACC[q]+2*j+1}')
    a('s_waitcnt vmcnt(0)\ns_barrier')
    a(f'ds_read_b128 v[{Kb[0]}:{Kb[0]+3}], v10\nds_read_b128 v[{Kb[0]+4}:{Kb[0]+7}], v10 offset:1024')
    def qk(D, kb, q, C):
        return [f'v_mfma_f32_32x32x16_bf16 v[{D}:{D+15}], v[{kb}:{kb+3}], v[{Qr[q]}:{Qr[q]+3}], {C}',
                f'v_mfma_f32_32x32x16_bf16 v[{D}:{D+15}], v[{kb+4}:{kb+7}], v[{Qr[q]+4}:{Qr[q]+7}], v[{D}:{D+15}]']
    def pv(Z, vb, q):
        return [f'v_smfmac_f32_32x32x32_bf16 v[{O[q]}:{O[q]+15}], v[{vb}:{vb+3}], v[{Z}:{Z+7}], v{IDX}',
                f'v_smfmac_f32_32x32x32_bf16 v[{O[q]}:{O[q]+15}], v[{vb+4}:{vb+7}], v[{Z+8}:{Z+15}], v{IDX}',
                f'v_smfmac_f32_16x16x64_bf16 v[{Lr[q]}:{Lr[q]+3}], v[{ONE}:{ONE+3}], v[{Z}:{Z+7}], v{IDX}',
                f'v_smfmac_f32_16x16x64_bf16 v[{Lr[q]}:{Lr[q]+3}], v[{ONE}:{ONE+3}], v[{Z+8}:{Z+15}], v{IDX}']
    def max16(d, X_, init):
        if init: a(f'v_max3_f32 v{d}, v{X_}, v{X_+1}, v{X_+2}\nv_max_f32 v{d}, v{d}, v{X_+15}'); r = range(3, 15, 2)
        else: r = range(0, 16, 2)
        for j in r: a(f'v_max3_f32 v{d}, v{d}, v{X_+j}, v{X_+j+1}')
    def setneg(off):
        for q in range(2):
            a(f'v_mov_b32 v5, v{3+q}\nv_permlane32_swap_b32 v5, v{3+q}\nv_max_f32 v5, v5, v{3+q}\nv_sub_f32 v{NM[q]}, {f32(-off)}, v5')
            for j in range(1, 16): a(f'v_mov_b32 v{NM[q]+j}, v{NM[q]}')
    a('s_waitcnt lgkmcnt(0)')
    for x in qk(S[1], Kb[0], 0, '0') + qk(S[2], Kb[0], 1, '0'): a(x)
    max16(3, S[1], True); max16(4, S[2], True)
    setneg(OFF)
    for x in qk(S[0], Kb[0], 0, f'v[{NM[0]}:{NM[0]+15}]'): a(x)
    a('s_mov_b32 s41, 16\ns_nop 9')
    stamp(a, 6, 1); stamp(a, 12, 0, cyc=True)
    M = a.lab('main')
    a(f'.p2align 6\n{M}:')
    for t in range(8):
        X_, Y, Z = S[t % 4], S[(t+1) % 4], S[(t-1) % 4]
        qn = (t+1) & 1; qp = (t-1) & 1
        m = qk(Y, Kb[((t+1) >> 1) & 1], qn, f'v[{NM[qn]}:{NM[qn]+15}]') + pv(Z, Vb[((t-1) >> 1) & 1], qp)
        m = [m[i] for i in order]
        post = [[] for _ in range(6)]
        if t % 2 == 0:
            j = t//2; b = Vb[j & 1]; off = j*4096 + 2048
            dv = [f'ds_read_b128 v[{b}:{b+3}], v10 offset:{off}', f'ds_read_b128 v[{b+4}:{b+7}], v10 offset:{off+1024}']
            j = t//2 + 1; b = Kb[j & 1]; va, off = (10, j*4096) if j < 4 else (11, 0)
            dk = [f'ds_read_b128 v[{b}:{b+3}], v{va} offset:{off}', f'ds_read_b128 v[{b+4}:{b+7}], v{va} offset:{off+1024}']
            for i, x in zip(rdpos, dk + dv): post[i].append(x)
        else:
            post[waitpos2].append('s_waitcnt lgkmcnt(0)')
        if t % 2 == 0 and waitpos is not None: post[waitpos].append('s_waitcnt lgkmcnt(2)')
        if t == 5: post[barpos].append('s_barrier')
        if t == 7:
            post[0] += ['s_add_u32 s40, s40, 16384', 's_and_b32 s40, s40, 0xffff']
            post[1] += ['s_sub_u32 s41, s41, 1', 's_cmp_lg_u32 s41, 0', 'v_mov_b32 v10, v11', 'v_add_u32 v11, s40, v9']
        e = [f'v_exp_f32 v{X_+i}, v{X_+i}' for i in range(16)]
        w = [2 if '32x32' in x else 1 for x in m]; tot = sum(w); acc = 0; used = 0
        for i, x in enumerate(m):
            a(x)
            for y in post[i]: a(y)
            acc += w[i]; upto = (16*acc + tot//2)//tot
            for y in e[used:upto]: a(y)
            used = upto
    a(f's_cbranch_scc1 {M}')
    stamp(a, 12, 1, cyc=True); stamp(a, 7, 0)
    for x in pv(S[3], Vb[1], 1): a(x)
    a('s_mov_b32 s47, 0')
    EP = a.lab('epi'); FB = a.lab('fallback'); DONE = a.lab('done')
    a(f'{EP}:')
    a(f'v_rcp_f32 v3, v{Lr[0]}')
    a(f'v_mov_b32 v6, 0\nv_mov_b32 v7, 0\nv_mov_b32 v14, 0\nv_mov_b32 v15, 0\ns_mov_b32 s44, {f32(2.0**100)}')
    for q in range(2):
        if q == 1: a(f'v_rcp_f32 v4, v{Lr[1]}\ns_add_u32 s48, s46, 65536')
        for j in range(0, 16, 2):
            c = 6 if (j & 2) else 14
            a(f'v_pk_fma_f32 v[{c}:{c+1}], v[{O[q]+j}:{O[q]+j+1}], 0, v[{c}:{c+1}]')
        for j in range(16): a(f'v_mul_f32 v{S[q]+j}, v{O[q]+j}, v{3+q}')
        for j in range(8): a(f'v_cvt_pk_bf16_f32 v{S[2]+8*q+j}, v{S[q]+2*j}, v{S[q]+2*j+1}')
        for j in range(2): a(f'buffer_store_dwordx4 v[{S[2]+8*q+4*j}:{S[2]+8*q+4*j+3}], v13, s[24:27], s{46+2*q} offen offset:{512*j}{common.ST}')
    a('v_add_f32 v6, v6, v7\nv_add_f32 v14, v14, v15\nv_cmp_u_f32 s[50:51], v6, v14')
    a(f'v_cmp_nge_f32 s[52:53], s44, v{Lr[0]}\nv_cmp_nge_f32 s[54:55], s44, v{Lr[1]}')
    a('s_or_b64 s[50:51], s[50:51], s[52:53]\ns_or_b64 s[50:51], s[50:51], s[54:55]')
    a(f's_cbranch_scc1 {FB}')
    a(f'{DONE}:')
    stamp(a, 2, 1)
    a('s_endpgm')
    a(f'{FB}:')
    a(f's_cmp_eq_u32 s47, 1\ns_cbranch_scc1 {DONE}\ns_mov_b32 s47, 1\ns_waitcnt vmcnt(0)')
    a('v_mov_b32 v3, 0xff800000\nv_mov_b32 v4, 0xff800000\ns_mov_b32 s40, 0')
    F1 = a.lab('f1'); F2 = a.lab('f2')
    a(f'{F1}:')
    a(f'buffer_load_dwordx4 v[{Kb[0]}:{Kb[0]+3}], v9, s[28:31], s40 offen sc1\nbuffer_load_dwordx4 v[{Kb[0]+4}:{Kb[0]+7}], v9, s[28:31], s40 offen offset:1024 sc1')
    a('s_waitcnt vmcnt(0)')
    for x in qk(S[1], Kb[0], 0, '0') + qk(S[2], Kb[0], 1, '0'): a(x)
    max16(3, S[1], False); max16(4, S[2], False)
    a(f's_add_u32 s40, s40, 4096\ns_cmp_lt_u32 s40, 262144\ns_cbranch_scc1 {F1}')
    setneg(11.0)
    for j in range(32): a(f'v_mov_b32 v{O[0]+j}, 0')
    for j in range(8): a(f'v_mov_b32 v{Lr[0]+j}, 0')
    a(f's_mov_b32 s40, 0\n{F2}:')
    for j in range(2):
        a(f'buffer_load_dwordx4 v[{Kb[0]+4*j}:{Kb[0]+4*j+3}], v9, s[28:31], s40 offen offset:{1024*j} sc1')
        a(f'buffer_load_dwordx4 v[{Vb[0]+4*j}:{Vb[0]+4*j+3}], v9, s[28:31], s40 offen offset:{2048+1024*j} sc1')
    a('s_waitcnt vmcnt(0)')
    for q in range(2):
        for x in qk(S[q], Kb[0], q, f'v[{NM[q]}:{NM[q]+15}]'): a(x)
    for q in range(2):
        for i in range(16): a(f'v_exp_f32 v{S[q]+i}, v{S[q]+i}')
    for q in range(2):
        for x in pv(S[q], Vb[0], q): a(x)
    a(f's_add_u32 s40, s40, 4096\ns_cmp_lt_u32 s40, 262144\ns_cbranch_scc1 {F2}')
    a(f's_branch {EP}')

    a(f'{ld}:')
    if hp0: a(f's_setprio {hp0}')
    ldptr(a, 52, 'w1'); ldptr(a, 54, 'w2'); ldptr(a, 56, 'wo'); ldptr(a, 58, 'wk'); ldptr(a, 60, 'wv')
    XH = 64
    xr = lambda s, j: XH + 8*s + 4*j
    a('s_sub_u32 s42, s95, 4\nv_lshlrev_b32 v11, 4, v2\nv_lshrrev_b32 v30, 3, v2\nv_and_b32 v31, 7, v2')
    a('v_lshlrev_b32 v28, 11, v30\nv_lshl_add_u32 v28, v31, 4, v28\nv_add_u32 v29, 16384, v28')
    a('s_lshl_b32 s43, s12, 17\ns_lshl_b32 s3, s42, 15\ns_add_u32 s43, s43, s3')
    a('s_waitcnt lgkmcnt(0)')
    srd_in(a, 20, 4, 'x')
    a('s_mov_b32 s47, s94\ns_brev_b32 s49, 8')
    for s in range(16):
        a('s_lshr_b32 s3, s47, 21\ns_add_u32 s3, s3, s43\ns_add_u32 s47, s47, s49')
        for j in range(2): a(f'buffer_load_dwordx4 v[{xr(s,j)}:{xr(s,j)+3}], v{28+j}, s[20:23], s3 offen')
    stamp(a, 0, 0)
    srd_in(a, 24, 8, 'c')
    a('v_lshlrev_b32 v3, 3, v2\ns_lshr_b32 s3, s2, 6\ns_lshl_b32 s3, s3, 9\nbuffer_load_dwordx2 v[0:1], v3, s[24:27], s3 offen')
    a('s_and_b32 s3, s13, 1\ns_cmp_eq_u32 s3, 0\ns_cselect_b32 s58, s58, s60\ns_cselect_b32 s59, s59, s61')
    srd_in(a, 24, 58, 'wk'); srd_in(a, 16, 70, 'wq')
    a(f'v_lshlrev_b32 v3, 5, v31\nv_add_u32 v3, {DB}, v3')
    a(f'v_xor_b32 v4, v30, v31\nv_lshlrev_b32 v4, 4, v4\nv_lshl_add_u32 v4, v31, 9, v4\ns_lshr_b32 s3, s42, 1\ns_lshl_b32 s3, s3, 12\ns_and_b32 s44, s42, 1\ns_lshl_b32 s44, s44, 8')
    a(f's_add_u32 s3, s3, s44\ns_add_u32 s3, s3, {HB}\nv_add_u32 v4, s3, v4')
    a('v_and_b32 v5, 3, v30\nv_lshrrev_b32 v6, 1, v5\nv_lshlrev_b32 v6, 2, v6\nv_xor_b32 v6, v6, v31\nv_lshrrev_b32 v29, 5, v2')
    a('v_lshlrev_b32 v5, 11, v5\nv_lshl_add_u32 v5, v29, 7, v5\nv_lshl_add_u32 v5, v6, 4, v5\nv_lshrrev_b32 v7, 2, v2\nv_and_b32 v8, 3, v2')
    a('v_lshlrev_b32 v29, 1, v29\nv_xor_b32 v29, v8, v29\nv_lshlrev_b32 v28, 6, v7\nv_lshl_add_u32 v28, v29, 4, v28')
    a('v_add_u32 v6, 7168, v5\nv_add_u32 v7, 14336, v5\nv_add_u32 v8, 21504, v5')
    a(f's_lshl_b32 s44, s42, 14\ns_lshl_b32 s36, s13, 8\ns_lshl_b32 s3, s42, 15\ns_add_u32 s36, s36, s3\ns_lshl_b32 s45, s42, 12\ns_add_u32 s45, s45, {QB}')
    a(f'v_lshlrev_b32 v29, 3, v30\ns_lshl_b32 s3, s42, 7\ns_add_u32 s3, s3, {STT}\nv_add_u32 v29, s3, v29\ns_mov_b32 s46, 0x3f803f80')
    def wq_issue(st, part=(0, 1, 2, 3)):
        if part[0] == 0: a(f's_add_u32 m0, s45, {(st % 4)*16384}\ns_lshr_b32 s37, s47, 11\ns_add_u32 s37, s37, s36\ns_add_u32 s47, s47, s49')
        for i in part: a(f'buffer_load_dwordx4 v{5+i}, s[16:19], s37 offen offset:{1024*i} lds')
    SA = 40
    for s in range(16):
        a('s_waitcnt vmcnt(31)')
        if s == 0: stamp(a, 0, 1)
        if s == 8: stamp(a, 1, 0)
        if s == 15: stamp(a, 1, 1)
        for r in range(4):
            for j in range(2):
                x_ = xr(s, j) + r; c1 = SA + 2*j + (r & 1); c2 = c1 + 4; first = s == 0 and r < 2
                a(f'v_dot2_f32_bf16 v{c1}, v{x_}, s46, ' + ('0' if first else f'v{c1}'))
                a(f'v_dot2_f32_bf16 v{c2}, v{x_}, v{x_}, ' + ('0' if first else f'v{c2}'))
        if s < 8:
            if s % 2 == 0: a(f's_mov_b32 m0, s44\ns_lshr_b32 s37, s94, 16\ns_add_u32 s37, s37, s44\ns_and_b32 s37, s37, 0xffff')
            for i in range(2): a(f'buffer_load_dwordx4 v28, s[24:27], s37 offen offset:{((2*s+i) % 4)*1024} lds')
            if s % 2 == 1: a('s_add_u32 s44, s44, 4096')
        else: wq_issue((s-8)//2, (0, 1) if s % 2 == 0 else (2, 3))
    for c in range(0, 8, 2): a(f'v_add_f32 v{SA+c}, v{SA+c}, v{SA+c+1}')
    for d in ('quad_perm:[1,0,3,2]', 'quad_perm:[2,3,0,1]', 'row_half_mirror'):
        for c in range(0, 8, 2): a(f'v_add_f32_dpp v{SA+c}, v{SA+c}, v{SA+c} {d} row_mask:0xf bank_mask:0xf')
    RN = 48
    for j in range(2):
        a(f'v_mul_f32 v{SA+1+2*j}, {f32(-1/1024)}, v{SA+2*j}\nv_mul_f32 v{SA+5+2*j}, {f32(1/1024)}, v{SA+4+2*j}')
    for j in range(2):
        a(f'v_fma_f32 v{SA+5+2*j}, -v{SA+1+2*j}, v{SA+1+2*j}, v{SA+5+2*j}\nv_max_f32 v{SA+5+2*j}, 0, v{SA+5+2*j}\nv_add_f32 v{SA+5+2*j}, {f32(1e-5)}, v{SA+5+2*j}')
    for j in range(2): a(f'v_rsq_f32 v{RN+2*j}, v{SA+5+2*j}')
    for j in range(2): a(f'v_mul_f32 v{RN+1+2*j}, v{SA+1+2*j}, v{RN+2*j}')
    a(f's_mov_b32 exec_lo, 0x01010101\ns_mov_b32 exec_hi, 0x01010101\nds_write_b64 v29, v[{RN}:{RN+1}]\nds_write_b64 v29, v[{RN+2}:{RN+3}] offset:64\ns_mov_b64 exec, -1')
    stamp(a, 19, 0)
    a('s_waitcnt lgkmcnt(0)\ns_barrier')
    TT = 192
    for s in range(16):
        for j in range(2):
            for r in range(4):
                t = TT + 2*((4*j + r) % 8); x_ = xr(s, j) + r
                unp(t, t+1, x_); nrm(t, RN+2*j)
                a(f'v_cvt_pk_bf16_f32 v{x_}, v{t}, v{t+1}')
    S1, S2 = KA1 // 64, KC2 // 64
    a('s_and_b32 s48, s42, 1')
    t3, t4, t5, t6, t7, t8, t9 = range(32, 39)
    a(f'v_and_b32 v{t3}, 15, v2\nv_lshrrev_b32 v{t4}, 4, v2\nv_lshrrev_b32 v{t5}, 2, v2\nv_and_b32 v{t5}, 3, v{t5}\nv_and_b32 v{t6}, 3, v2\ns_mov_b32 s43, 7168')
    for i in range(7):
        a(f'v_add_u32 v{t7}, {4*i}, v{t4}\nv_mul_u32_u24 v{t8}, 9363, v{t7}\nv_lshrrev_b32 v{t8}, 16, v{t8}')
        a(f'v_mul_u32_u24 v{t9}, 7, v{t8}\nv_sub_u32 v{t9}, v{t7}, v{t9}\nv_and_b32 v{t7}, 1, v{t8}\nv_lshlrev_b32 v{t7}, 1, v{t7}\nv_xor_b32 v{t7}, v{t7}, v{t6}')
        a(f'v_lshl_add_u32 v{t8}, v{t8}, 2, v{t5}\nv_mul_u32_u24 v{t8}, s43, v{t8}\nv_lshl_add_u32 v{t8}, v{t9}, 6, v{t8}\nv_lshl_add_u32 v{12+i}, v{t7}, 4, v{t8}')
    n1 = S1 // 2; n2 = S2 // 4
    assert S1 % 2 == 0 and S2 % 4 == 0 and 14 + n1 + n2 + 4 == 32
    a('s_lshr_b32 s3, s2, 7\ns_lshl_b32 s3, s3, 7')
    a(f'v_lshlrev_b32 v20, 11, v{t5}\nv_lshl_add_u32 v20, v{t4}, 6, v20\nv_lshl_add_u32 v20, v{t6}, 4, v20\nv_xor_b32 v20, s3, v20')
    a(f's_mul_i32 s3, s48, {n1}\ns_and_b32 s3, s3, 1\ns_lshl_b32 s3, s3, 5\nv_xor_b32 v20, s3, v20\nv_xor_b32 v21, 32, v20')
    a(f'v_lshrrev_b32 v{t7}, 1, v{t4}\nv_lshl_add_u32 v{t9}, v{t7}, 2, v{t5}\nv_and_b32 v{t8}, 1, v{t4}\nv_lshlrev_b32 v{t8}, 6, v{t8}')
    a(f'v_lshl_add_u32 v22, v{t9}, 11, v{t8}\nv_lshlrev_b32 v{t7}, 1, v{t7}\nv_xor_b32 v{t7}, v{t7}, v{t6}\nv_lshl_add_u32 v22, v{t7}, 4, v22')
    a(f's_mov_b32 s43, 12288\nv_mul_u32_u24 v23, s43, v{t9}\nv_add_u32 v23, v23, v{t8}\nv_lshl_add_u32 v23, v{t6}, 4, v23\nv_xor_b32 v24, 32, v23')
    a(f'v_lshlrev_b32 v{t8}, 10, v{t4}\nv_lshl_add_u32 v{t8}, v{t5}, 6, v{t8}\nv_lshl_add_u32 v{t8}, v{t6}, 3, v{t8}\nv_and_b32 v{t7}, 1, v{t4}\nv_lshl_add_u32 v{t8}, v{t7}, 5, v{t8}')
    a(f's_lshl_b32 s3, s48, 8\ns_add_u32 s3, s3, {QB}\nv_add_u32 v25, s3, v{t8}\nv_xor_b32 v26, 32, v25')
    a(f'v_lshlrev_b32 v27, 4, v{t4}\ns_lshl_b32 s3, s48, 9\ns_add_u32 s3, s3, {HB}\nv_add_u32 v31, s3, v27\nv_lshlrev_b32 v30, 3, v2\nv_add_u32 v30, s3, v30')
    a(f'v_mov_b32 v{t7}, 0x7ff00000\nv_cmp_eq_u32 vcc, 0, v{t3}\nv_cndmask_b32 v27, v{t7}, v27, vcc')
    a('s_lshr_b32 s58, s2, 4\ns_and_b32 s59, s2, 15')
    a(f's_mul_i32 s60, s58, {64*7168}\ns_mul_i32 s3, s48, {32*7168}\ns_add_u32 s60, s60, s3\ns_mul_i32 s3, s59, 448\ns_add_u32 s60, s60, s3')
    a(f's_lshl_b32 s61, s59, 4\ns_add_u32 s61, s61, s58\ns_lshl_b32 s61, s61, 1\ns_add_u32 s61, s61, s48\ns_mul_i32 s61, s61, 14336')
    a(f's_lshr_b32 s3, s2, 3\ns_lshl_b32 s3, s3, 1\ns_add_u32 s3, s3, s48\ns_mul_i32 s3, s3, {n1}\ns_and_b32 s43, s2, 7')
    a(f's_lshl_b32 s62, s3, 13\ns_lshl_b32 s63, s43, 8\ns_add_u32 s62, s62, s63\ns_mul_i32 s63, s43, {32*S1}\ns_add_u32 s63, s63, s3\ns_lshl_b32 s63, s63, 10')
    if common.K6MAP: a(f's_lshr_b32 s3, s2, 6\ns_mul_i32 s3, s3, {(14-n1)*131072}\ns_add_u32 s62, s62, s3')
    a(f's_lshl_b32 s43, s58, 1\ns_add_u32 s43, s43, s48\ns_mul_i32 s3, s43, {n2}')
    a(f's_lshl_b32 s64, s3, 14\ns_lshl_b32 s65, s59, 7\ns_add_u32 s64, s64, s65')
    if common.K6MAP: a(f's_lshr_b32 s65, s43, 3\ns_add_u32 s65, s65, 1\ns_mul_i32 s65, s65, {n1*131072}\ns_add_u32 s64, s64, s65')
    else: a(f's_add_u32 s64, s64, {2*KA1*2048}')
    a(f's_mul_i32 s65, s59, {8*S2}\ns_add_u32 s65, s65, s3\ns_lshl_b32 s65, s65, 10\ns_add_u32 s65, s65, {16*S1*16384}')
    a(f's_lshl_b32 s66, s43, 16\ns_lshl_b32 s3, s59, 7\ns_add_u32 s66, s66, s3\ns_lshl_b32 s67, s59, 5\ns_add_u32 s67, s67, s43\ns_lshl_b32 s67, s67, 12')
    a(f's_lshr_b32 s58, s2, 6\ns_and_b32 s59, s2, 63\ns_lshl_b32 s3, s58, 1\ns_add_u32 s3, s3, s48\ns_mul_i32 s68, s3, {128*12288}\ns_lshl_b32 s3, s59, 7\ns_add_u32 s68, s68, s3\ns_add_u32 s68, s68, 4096')
    a(f's_lshl_b32 s69, s48, 14\ns_add_u32 s69, s69, {QB}')
    a(f's_mul_i32 s51, s58, {6144*4}\ns_lshl_b32 s3, s59, 8\ns_add_u32 s51, s51, s3\ns_lshl_b32 s3, s48, 7\ns_add_u32 s51, s51, s3\ns_add_u32 s51, s51, 8192')
    srd_in(a, 24, 56, 'wo'); srd_ws(a, 32, 6, 'W2T'); srd_in(a, 72, 10, 'wmod'); srd_ws(a, 80, 6, 'MODP'); srd_in(a, 20, 54, 'w2'); srd_ws(a, 76, 6, 'WOT')
    stamp(a, 19, 1)
    a('s_waitcnt vmcnt(0)\ns_barrier')
    def gs(st):
        b = 32 + 16*(st & 1)
        a(f'ds_read_b128 v[{b}:{b+3}], v3 offset:{4096+256*st}\nds_read_b128 v[{b+4}:{b+7}], v3 offset:{4096+256*st+16}')
        a(f'ds_read_b128 v[{b+8}:{b+11}], v3 offset:{256*st}\nds_read_b128 v[{b+12}:{b+15}], v3 offset:{256*st+16}')
    def hstage(st, wait):
        b = 32 + 16*(st & 1)
        for j in range(2):
            for r in range(4): unp(TT+8*j+2*r, TT+8*j+2*r+1, xr(st, j)+r)
        if wait: a(wait)
        for j in range(2):
            mad8(TT+8*j, b, b+8)
            for r in range(4): a(f'v_cvt_pk_bf16_f32 v{xr(st,j)+r}, v{TT+8*j+2*r}, v{TT+8*j+2*r+1}')
            a(f'ds_write_b128 v4, v[{xr(st,j)}:{xr(st,j)+3}] offset:{(st % 3)*8192 + 128*j}')
    gs(0); gs(1); hstage(0, 's_waitcnt lgkmcnt(4)'); gs(2); hstage(1, 's_waitcnt lgkmcnt(6)'); gs(3); hstage(2, 's_waitcnt lgkmcnt(6)')
    a('s_waitcnt lgkmcnt(0)\ns_barrier')
    for i in range(1, 16):
        def tr(n):
            if common.STAMPS: a(f's_memtime s[{84+2*n}:{85+2*n}]')
        a(f's_waitcnt vmcnt({4*max(0, min(i+2, 15) - max(i, 3))}) lgkmcnt(0)')
        if common.STAMPS and i > 1:
            for n in range(3): a(f'v_writelane_b32 v249, s{84+2*n}, {4*(i-1)+n}')
        tr(3)
        a('s_barrier')
        tr(0)
        if common.STAMPS: a(f's_waitcnt lgkmcnt(0)\nv_writelane_b32 v249, s90, {4*(i-1)+3}')
        if i + 3 <= 15: wq_issue(i+3)
        tr(1)
        if i + 2 <= 15:
            if i + 3 <= 15: gs(i+3)
            hstage(i+2, None)
        tr(2)
    if common.STAMPS:
        a('s_waitcnt lgkmcnt(0)')
        a(f's_add_u32 s84, s6, {0x9000000 + 0x40000}\ns_addc_u32 s85, s7, 0\ns_mov_b32 s86, 0x40000\ns_mov_b32 s87, 0x20000')
        a('s_lshl_b32 s88, s2, 10\ns_lshl_b32 s89, s42, 8\ns_add_u32 s88, s88, s89\nv_lshrrev_b32 v248, 2, v11\nbuffer_store_dword v249, v248, s[84:87], s88 offen')
    PF = a.lab('pf')
    if hp0: a('s_setprio 0')
    a(f's_cmp_ge_u32 s42, 2\ns_cbranch_scc1 {PF}')
    srd_ws(a, 28, 6, 'KV')
    a('s_lshl_b32 s46, s42, 13\ns_add_u32 s46, s46, 32768\ns_mov_b32 s47, s46')
    KL = a.lab('kvl')
    a(f's_mov_b32 s41, 17\n{KL}:')
    a('s_waitcnt vmcnt(8)\ns_barrier')
    for g_ in range(2):
        a(f's_add_u32 m0, s47, {4096*g_}')
        for i in range(4): a(f'buffer_load_dwordx4 v11, s[28:31], s46 offen offset:{1024*i} sc1 lds')
        a(f's_add_u32 s46, s46, {4096 if g_ == 0 else 12288}')
    a('s_add_u32 s47, s47, 16384\ns_and_b32 s47, s47, 0xffff')
    a(f's_sub_u32 s41, s41, 1\ns_cmp_lg_u32 s41, 0\ns_cbranch_scc1 {KL}')
    a('s_waitcnt vmcnt(0)')
    stamp(a, 2, 1)
    a('s_endpgm')
    a(f'{PF}:')
    srd_in(a, 16, 52, 'w1'); srd_ws(a, 28, 6, 'W1T')
    a(f's_mov_b32 s50, {f32(-LOG2E)}')
    for j in range(2): unpk(a, 32+2*j, 33+2*j, j)
    for j in range(4): a(f'v_mul_f32 v{36+j}, s50, v{32+j}')
    for j in range(4): a(f'v_exp_f32 v{36+j}, v{36+j}')
    for j in range(4): a(f'v_add_f32 v{36+j}, 1.0, v{36+j}')
    for j in range(4): a(f'v_rcp_f32 v{36+j}, v{36+j}')
    for j in range(4): a(f'v_mul_f32 v{32+j}, v{32+j}, v{36+j}')
    a('v_cvt_pk_bf16_f32 v0, v32, v33\nv_cvt_pk_bf16_f32 v1, v34, v35')
    for j in range(pf_delay): a('s_barrier')
    RG = 32; BF = 96
    a('ds_write_b64 v30, v[0:1]')
    for kb in range(8): a(f'ds_read_b128 v[{BF+4*kb}:{BF+4*kb+3}], v31 offset:{64*kb}')
    units = []
    for u in range(4): units.append((24, 22, 66, 16384, 76, 67))
    for u in range(14): units.append((16, 12 + u % 7, 60, 16*7168 if u == 6 else 0, 28, 61))
    for u in range(n1): units.append((20, 20 + (u & 1), 62, 8192, 32, 63))
    for u in range(n2): units.append((20, 22, 64, 16384, 32, 65))
    nb = pf_delay
    assert pf_delay >= 1
    L = lambda i: 6 if 0 <= i < 8 else 0
    for i in range(11):
        if 2 <= i < 10:
            b = i - 2
            a(f's_waitcnt vmcnt({(4 if i >= 3 else 0) + L(i-1)})')
            for j in range(4):
                sr, vo, ss, sadd, dr, dsr = units[4*b + j]; r = RG + 16*(b % 3) + 4*j
                a(f'buffer_store_dwordx4 v[{r}:{r+3}], v11, s[{dr}:{dr+3}], s{dsr} offen{rst}\ns_add_u32 s{dsr}, s{dsr}, 1024')
        if i < 8:
            for j in range(2):
                a(f's_add_u32 m0, s69, {(2*i+j)*1024}\nbuffer_load_dwordx4 v{23+j}, s[72:75], s68 offen lds\ns_add_u32 s68, s68, {8*12288}')
            for j in range(4):
                sr, vo, ss, sadd, dr, dsr = units[4*i + j]; r = RG + 16*(i % 3) + 4*j
                a(f'buffer_load_dwordx4 v[{r}:{r+3}], v{vo}, s[{sr}:{sr+3}], s{ss} offen')
                if sadd: a(f's_add_u32 s{ss}, s{ss}, {sadd}')
        if i < 10: a('s_barrier'); nb += 1
    assert nb <= 17
    if hprio: a(f's_setprio {hprio}')
    AF = 128; DD = 192
    for kb in range(8):
        for nt in range(2):
            r = AF + 8*kb + 4*nt
            for h in range(2): a(f'ds_read_b64_tr_b16 v[{r+2*h}:{r+2*h+1}], v{25+nt} offset:{kb*4096 + h*512}')
    for kb in range(8):
        a(f's_waitcnt lgkmcnt({min(15, 28-4*kb)})')
        for nt in range(2):
            r = AF + 8*kb + 4*nt
            a(f'v_mfma_f32_16x16x32_bf16 v[{DD+4*nt}:{DD+4*nt+3}], v[{r}:{r+3}], v[{BF+4*kb}:{BF+4*kb+3}], ' + (f'v[{DD+4*nt}:{DD+4*nt+3}]' if kb else '0'))
    for nt in range(2): a(f'buffer_store_dwordx4 v[{DD+4*nt}:{DD+4*nt+3}], v27, s[80:83], s51 offen offset:{64*nt}')
    a('s_waitcnt vmcnt(0)')
    stamp(a, 2, 1)
    a(f'{end}:\ns_endpgm')
    return k
```

```python
from common import *
import common

OFF = 60.0
def k3g(order=(0,1,2,4,3,5), pf_delay=1, prio=1, rdpos=(0,1,2,3), waitpos=5, waitpos2=1, barpos=4, rst=' sc1', hprio=2, pflag=4, ppoll=11, pchk=0, xmap=1,
        cp0=2, cp1=0, hp0=1, cpf=1, dot='c', swp=8, sw1=' sc1', slate=0, kvs=' sc1', bars=(4, 7, 10), wst=(3, 5, 7, 9), kwl=0, xa=8, qt=0, hpq=0, wpos=(5, 12), gpos=24):
    HB = 0; DB = 24576; AB = 32768; QB = 98304
    KH = AB + 32768
    SCR = HB
    KVF, TAG = 0x8000, 0x9000
    SLOT = [QB, QB+16384, QB+32768, QB+49152, AB, AB+16384, QB, QB+16384, QB+32768, QB+49152, AB, AB+16384, AB+32768, AB+49152, QB, QB+16384]
    FL = HB + 16384
    k = Kern('k3_attn_kernel', 256, 512, 163840, 240 if not common.STAMPS else 256, sgpr=100)
    a = k.a
    end = a.lab('end'); ld = a.lab('loader')
    a(f's_cmp_ge_u32 s2, 256\ns_cbranch_scc1 {end}')
    ldptr(a, 6, 'ws'); ldptr(a, 4, 'x'); ldptr(a, 8, 'c'); ldptr(a, 10, 'wmod'); ldptr(a, 70, 'wq')
    waveid(a); ls = LS(a); ls(0); s0 = (ls.pend, ls.k)
    if xmap:
        a('s_and_b32 s14, s2, 7\ns_lshr_b32 s15, s2, 3\ns_and_b32 s94, s15, 3\ns_and_b32 s13, s14, 1\ns_lshl_b32 s13, s13, 2\ns_add_u32 s13, s13, s94')
        a('s_lshr_b32 s3, s15, 2\ns_lshr_b32 s12, s14, 1\ns_lshl_b32 s12, s12, 3\ns_add_u32 s12, s12, s3\ns_lshl_b32 s94, s94, 1\ns_add_u32 s94, s94, s3\ns_lshl_b32 s94, s94, 29')
    else:
        a('s_and_b32 s14, s2, 7\ns_lshr_b32 s15, s2, 3\ns_and_b32 s13, s15, 7\ns_lshl_b32 s12, s14, 2\ns_lshr_b32 s3, s15, 3\ns_add_u32 s12, s12, s3')
        a('s_lshl_b32 s94, s3, 1\ns_add_u32 s94, s94, s13\ns_lshl_b32 s94, s94, 29')
    a('v_and_b32 v2, 63, v0\ns_mov_b32 s96, 0xffff0000\ns_brev_b32 s49, 8')
    def unp(lo, hi, src): a(f'v_lshlrev_b32 v{lo}, 16, v{src}\nv_and_b32 v{hi}, s96, v{src}')
    def rnd(x, y, t): a(f'v_cvt_pk_bf16_f32 v{t}, v{x}, v{y}'); unp(x, y, t)
    def wq_gather(d, t, w):
        a(f'v_bfe_u32 v{d}, v2, 3, 1\nv_bfe_u32 v{d+1}, v2, 4, 1\nv_lshl_add_u32 v{d}, v{d+1}, 3, v{d}\nv_lshlrev_b32 v{d+1}, 2, v{d+1}\nv_and_b32 v{t}, 7, v2\nv_xor_b32 v{d+1}, v{d+1}, v{t}\nv_lshrrev_b32 v{t}, 5, v2')
        a(f'v_lshlrev_b32 v{d}, 11, v{d}\nv_lshl_add_u32 v{d}, v{t}, 7, v{d}\nv_lshl_add_u32 v{d}, v{d+1}, 4, v{d}')
        a(f'v_add_u32 v{d+1}, 31744, v{d}\nv_add_u32 v{d+2}, {2*31744}, v{d}\nv_add_u32 v{d+3}, {3*31744}, v{d}')
        a(f's_lshl_b32 s98, s{w}, 12\ns_lshl_b32 s97, s13, 8\ns_add_u32 s97, s97, s98')
    def wq_issue(st, d, sr):
        a(f's_add_u32 m0, s98, {SLOT[st]}\ns_lshr_b32 s99, s47, 11\ns_add_u32 s99, s99, s97\ns_add_u32 s47, s47, s49')
        for i in range(4): a(f'buffer_load_dwordx4 v{d+i}, s[{sr}:{sr+3}], s99 offen offset:{1024*i} lds')
    a(f's_cmp_ge_u32 s95, 4\ns_cbranch_scc1 {ld}')
    S = [16, 32, 48, 64]; O = [80, 96]; NM = [112, 128]; Qr = [144, 152]; Kb = [160, 168]; Vb = [176, 184]; Lr = [192, 196]; ONE = 200
    IDX = 12
    if cp0: a(f's_setprio {cp0}')
    ldptr(a, 58, 'wk'); ldptr(a, 60, 'wv')
    WM, ACCG = 32, 48
    a('v_lshrrev_b32 v4, 2, v0\ns_mov_b32 s3, 49152\nv_mul_u32_u24 v3, s3, v4\nv_and_b32 v11, 3, v0\nv_lshl_add_u32 v3, v11, 4, v3\nv_lshlrev_b32 v4, 3, v4\nv_mov_b32 v8, 0')
    a('s_and_b32 s40, s14, 1\ns_lshl_b32 s40, s40, 5\ns_add_u32 s40, s40, s15\ns_lshr_b32 s41, s14, 1')
    a(f's_mul_i32 s42, s41, {256*12288}\ns_lshl_b32 s3, s40, 6\ns_add_u32 s42, s42, s3\ns_lshl_b32 s43, s41, 9')
    a('s_waitcnt lgkmcnt(0)')
    srd_in(a, 16, 10, 'wmod'); srd_in(a, 20, 8, 'c'); srd_ws(a, 32, 6, 'HO')
    for j in range(4):
        a(f'buffer_load_dwordx4 v[{WM+4*j}:{WM+4*j+3}], v3, s[16:19], s42 offen')
        if j == 0: a(f'buffer_load_dwordx2 v[16:17], v4, s[20:23], s43 offen\ns_mov_b32 s3, {TAG}\nbuffer_load_dword v14, v8, s[32:35], s3 offen sc1')
        if j < 3: a('s_add_u32 s42, s42, 12288')
    if cpf:
        here = a.lab('here')
        a(f's_getpc_b64 s[64:65]\n{here}:\ns_mov_b32 s66, {end}-{here}\ns_mov_b32 s67, 0x20000\nv_lshlrev_b32 v9, 2, v0\ns_lshl_b32 s3, s15, 10\nbuffer_load_dword v229, v9, s[64:67], s3 offen')
    a('v_and_b32 v6, 15, v2\nv_lshrrev_b32 v7, 4, v2')
    a('s_lshl_b32 s44, s12, 2\ns_lshr_b32 s3, s13, 1\ns_add_u32 s44, s44, s3')
    a('v_lshlrev_b32 v9, 4, v2')
    a('s_and_b32 s48, s13, 1\ns_cmp_eq_u32 s48, 0\ns_cselect_b32 s58, s58, s60\ns_cselect_b32 s59, s59, s61')
    srd_in(a, 20, 58, 'wk'); srd_in(a, 60, 70, 'wq')
    srd_ws(a, 24, 6, 'O'); srd_ws(a, 28, 6, 'KV'); srd_ws(a, 36, 6, 'FLAG')
    a('v_lshrrev_b32 v3, 5, v2\nv_lshlrev_b32 v8, 11, v3\nv_lshrrev_b32 v4, 2, v2\nv_and_b32 v4, 3, v4\nv_lshl_add_u32 v8, v4, 7, v8')
    a('v_lshrrev_b32 v5, 1, v4\ns_and_b32 s3, s95, 1\nv_xor_b32 v5, s3, v5\nv_lshl_add_u32 v8, v5, 6, v8')
    a('v_and_b32 v5, 1, v7\nv_lshl_add_u32 v8, v5, 5, v8\nv_lshl_add_u32 v8, v11, 3, v8')
    a(f's_lshr_b32 s3, s95, 1\ns_lshl_b32 s3, s3, 9\ns_add_u32 s3, s3, {AB}\nv_add_u32 v8, s3, v8\nv_add_u32 v10, {QB-AB}, v8')
    a('v_lshl_add_u32 v15, v7, 3, v4\nv_lshlrev_b32 v15, 6, v15\nv_lshl_add_u32 v15, v11, 3, v15\nv_lshl_add_u32 v15, v5, 5, v15')
    a(f's_lshl_b32 s3, s95, 14\ns_add_u32 s3, s3, {AB}\nv_add_u32 v15, s3, v15\nv_xor_b32 v204, 32, v15')
    a(f'v_xor_b32 v207, v6, v7\nv_lshlrev_b32 v207, 4, v207\nv_lshl_add_u32 v207, v7, 8, v207\ns_lshl_b32 s3, s95, 13\ns_add_u32 s3, s3, {KH}\nv_add_u32 v207, s3, v207\nv_add_u32 v205, s3, v9')
    a('v_xor_b32 v1, 64, v207\nv_add_u32 v1, 1024, v1')
    a('s_lshl_b32 s3, s13, 1\ns_and_b32 s3, s3, 12\nv_add_u32 v0, s3, v6\nv_and_b32 v0, 15, v0')
    a('v_lshlrev_b32 v13, 15, v5\nv_lshl_add_u32 v13, v3, 8, v13\nv_lshl_add_u32 v13, v0, 4, v13')
    a('s_lshl_b32 s46, s12, 7\ns_lshl_b32 s3, s13, 2\ns_add_u32 s46, s46, s3\ns_add_u32 s46, s46, s95\ns_lshl_b32 s46, s46, 10')
    a('s_cmp_eq_u32 s48, 0\ns_cselect_b64 vcc, -1, 0')
    a(f's_cselect_b32 s56, {f32(LOG2E / 32**0.5)}, 1.0')
    a('v_cndmask_b32 v206, v3, v5, vcc\nv_cndmask_b32 v0, v5, v3, vcc\nv_lshlrev_b32 v206, 9, v206\nv_lshl_add_u32 v206, v0, 3, v206\nv_lshl_add_u32 v206, v6, 4, v206')
    a('s_lshr_b32 s3, s95, 1\ns_lshl_b32 s3, s3, 30\nv_or_b32 v206, s3, v206')
    a('s_and_b32 s3, s44, 1\ns_cmp_eq_u32 s48, 0\ns_cselect_b32 s45, s95, s3\ns_cselect_b32 s47, s3, s95')
    a('s_lshl_b32 s45, s45, 10\ns_lshl_b32 s47, s47, 8\ns_add_u32 s45, s45, s47\ns_lshl_b32 s47, s48, 11\ns_add_u32 s45, s45, s47')
    a('s_lshr_b32 s47, s44, 1\ns_lshl_b32 s47, s47, 12\ns_add_u32 s45, s45, s47')
    WQG, WKG = 224, 228
    a(f'v_lshlrev_b32 v0, 1, v3\nv_xor_b32 v0, v11, v0\nv_lshrrev_b32 v{WKG}, 2, v2\nv_lshlrev_b32 v{WKG}, 6, v{WKG}\nv_lshl_add_u32 v{WKG}, v0, 4, v{WKG}')
    a(f'v_lshlrev_b32 v11, 5, v11\nv_lshl_add_u32 v11, v7, 3, v11\ns_lshl_b32 s3, s95, 7\ns_add_u32 s3, s3, {SCR}\nv_add_u32 v11, s3, v11')
    a(f'v_and_b32 v5, 7, v2\nv_mov_b32 v4, 0x3f803f80\nv_cmp_eq_u32 vcc, 0, v5\nv_cmp_eq_u32 s[52:53], 4, v5\nv_mov_b32 v{IDX}, 0xdddddddd\nv_cndmask_b32 v{ONE}, 0, v4, vcc\nv_cndmask_b32 v{ONE+1}, 0, v4, vcc')
    a(f'v_cndmask_b32 v{ONE+2}, 0, v4, s[52:53]\nv_cndmask_b32 v{ONE+3}, 0, v4, s[52:53]')
    a(f'v_bfe_u32 v4, v2, 4, 1\nv_xor_b32 v3, v3, v4\nv_lshlrev_b32 v3, 4, v3\nv_lshl_add_u32 v3, v5, 5, v3\nv_bfe_u32 v4, v2, 3, 2\nv_lshl_add_u32 v4, v4, 10, v3')
    a(f's_mov_b32 s50, {f32(-LOG2E)}\ns_mov_b32 s51, 0x9e3779b1')
    a(f's_waitcnt vmcnt({3+cpf})')
    a('v_mul_lo_u32 v14, v14, s51\nv_add_u32 v14, 0x7f4a7c15, v14')
    for j in range(2): unp(18+2*j, 19+2*j, 16+j)
    for j in range(4): a(f'v_mul_f32 v{22+j}, s50, v{18+j}')
    for j in range(4): a(f'v_exp_f32 v{22+j}, v{22+j}')
    for j in range(4): a(f'v_add_f32 v{22+j}, 1.0, v{22+j}')
    for j in range(4): a(f'v_rcp_f32 v{22+j}, v{22+j}')
    for j in range(4): a(f'v_mul_f32 v{18+j}, v{18+j}, v{22+j}')
    for j in range(2): rnd(18+2*j, 19+2*j, 22+j)
    for j in range(4):
        if j: a(f's_waitcnt vmcnt({3-j+cpf})')
        for r in range(4): unp(56+2*r, 57+2*r, WM+4*j+r)
        for r in range(8): a(f'v_mul_f32 v{ACCG+r}, v{56+r}, v{18+j}' if j == 0 else f'v_fmac_f32 v{ACCG+r}, v{56+r}, v{18+j}')
    G = ACCG
    for r in range(4): a(f'v_permlane32_swap_b32 v{G+r}, v{G+4+r}')
    for r in range(4): a(f'v_add_f32 v{G+r}, v{G+r}, v{G+4+r}')
    a(f's_lshl_b32 s3, s95, 2\ns_add_u32 s3, s3, {SCR+512}\nv_mov_b32 v16, s3')
    for r in range(2): a(f'v_permlane16_swap_b32 v{G+r}, v{G+2+r}')
    for r in range(2): a(f'v_add_f32 v{G+r}, v{G+r}, v{G+2+r}')
    for rr in (8, 4):
        for r in range(2): a(f'v_add_f32_dpp v{G+r}, v{G+r}, v{G+r} row_ror:{rr} row_mask:0xf bank_mask:0xf')
    a(f's_mov_b32 exec_lo, 0x000f000f\ns_mov_b32 exec_hi, 0x000f000f\nds_write_b64 v11, v[{G}:{G+1}]\ns_mov_b64 exec, 1\nds_write_b32 v16, v14\ns_mov_b64 exec, -1')
    np_ = a.lab('np'); pj = a.lab('pj'); sp = a.lab('sp'); so = a.lab('so')
    a(f's_cmp_lg_u32 s95, 0\ns_cbranch_scc1 {np_}')
    a(f'v_mov_b32 v16, {SCR+512}\nv_and_b32 v17, 0x70, v9\nv_add_u32 v17, {SCR}, v17\ns_mov_b64 exec, 0xff')
    a(f's_lshl_b32 s42, s41, 13\ns_lshl_b32 s3, s40, 7\ns_add_u32 s42, s42, s3\ns_mov_b32 s52, 0x100000')
    a('s_mov_b32 s53, 0x07060503\ns_mov_b32 s54, 0x07060502\ns_mov_b32 s55, 0x07060501')
    a(f'{sp}:\nds_read_b128 v[20:23], v16')
    for w in range(4): a(f'ds_read_b128 v[{32+4*w}:{35+4*w}], v17 offset:{128*w}')
    a('s_waitcnt lgkmcnt(4)\nv_xor_b32 v21, v21, v14\nv_xor_b32 v22, v22, v14\nv_xor_b32 v23, v23, v14\nv_or3_b32 v21, v21, v22, v23\nv_cmp_eq_u32 vcc, 0, v21')
    a(f's_waitcnt lgkmcnt(0)\ns_cbranch_vccnz {so}\ns_sub_u32 s52, s52, 1\ns_cbranch_scc0 {sp}\n{so}:')
    for j in range(4): a(f'v_add_f32 v{32+j}, v{32+j}, v{36+j}\nv_add_f32 v{40+j}, v{40+j}, v{44+j}')
    for j in (3, 0, 1, 2): a(f'v_add_f32 v{32+j}, v{32+j}, v{40+j}')
    for j in range(3): a(f'v_perm_b32 v{32+j}, v{32+j}, v35, s{53+j}')
    a('v_mov_b32 v35, v14')
    a(f'buffer_store_dwordx4 v[32:35], v9, s[32:35], s42 offen sc1\ns_mov_b64 exec, -1\ns_branch {pj}')
    a(f'{np_}:\nv_mov_b32 v18, 0\nv_and_b32 v17, 31, v2\nv_lshlrev_b32 v17, 2, v17\ns_lshl_b32 s3, s2, 7\nbuffer_store_dword v18, v17, s[36:39], s3 offen\n{pj}:')
    ls(2)
    if cp0 != cp1: a(f's_setprio {cp1}')
    wq_gather(WQG, 0, 95)
    a('s_lshl_b32 s44, s95, 14\ns_mov_b32 s47, s94')
    for g_ in range(4):
        a(f's_add_u32 m0, s44, {AB}\ns_lshr_b32 s3, s94, 16\ns_add_u32 s3, s3, s44\ns_and_b32 s3, s3, 0xffff\ns_add_u32 s44, s44, 4096')
        for i in range(4): a(f'buffer_load_dwordx4 v{WKG}, s[20:23], s3 offen offset:{1024*i} lds')
    a('s_barrier')
    for st in range(4): wq_issue(st, WQG, 60)
    WF = 112; XK = 16; KA_ = 184; KR = 224
    WR = [[48, 52, 56, 60], [208, 212, 216, 220], [64, 68, 72, 76], [80, 84, 88, 92], [96, 100, 104, 108], [176, 180, 192, 196]]
    NPRE = len(WR)
    def wreg(st): return WR[st] if st < NPRE else WR[st & 1]
    def wread(st, ks):
        vw, o = (10, SLOT[st] - QB) if SLOT[st] >= QB else (8, SLOT[st] - AB); w = wreg(st)[ks]; o += ks*4096
        return [f'ds_read_b64_tr_b16 v[{w}:{w+1}], v{vw} offset:{o}', f'ds_read_b64_tr_b16 v[{w+2}:{w+3}], v{vw} offset:{o+1024}']
    def hreg(st, ks, j): return WF + 32*(st & 1) + 8*ks + 4*j
    def hread(st, ks, j): return f'ds_read_b128 v[{hreg(st,ks,j)}:{hreg(st,ks,j)+3}], v4 offset:{(st % 4)*8192 + ks*256 + 4096*j}'
    a('s_waitcnt vmcnt(16)')
    for s in range(8):
        for ft in range(2):
            d = WF + 8*s + 4*ft
            a(f'ds_read_b64_tr_b16 v[{d}:{d+1}], v{(15, 204)[ft]} offset:{s*2048}\nds_read_b64_tr_b16 v[{d+2}:{d+3}], v{(15, 204)[ft]} offset:{s*2048+256}')
    a('s_waitcnt vmcnt(0) lgkmcnt(0)')
    ls(11)
    a('s_barrier')
    for st in range(4):
        for ks in range(4):
            for x in wread(st, ks): a(x)
    for st in (4, 5): wq_issue(st, WQG, 60)
    a('s_waitcnt vmcnt(0) lgkmcnt(0)')
    ls(13)
    a('s_barrier')
    for st in (4, 5):
        for ks in range(4):
            for x in wread(st, ks): a(x)
    for st in (6, 7, 8, 9): wq_issue(st, WQG, 60)
    a('s_waitcnt lgkmcnt(0)\ns_barrier')
    for st in (10, 11): wq_issue(st, WQG, 60)
    if prio != cp1: a(f's_setprio {prio}')
    ls(14)
    a('s_barrier')
    ls(16)
    ACC = [16, 32]
    issued = []; done = [0]
    def lds(x, key=None): a(x); issued.append(key)
    def need(keys):
        n = max(i for i, k_ in enumerate(issued) if k_ in keys) + 1
        if n > done[0]:
            c = min(15, len(issued) - n); a(f's_waitcnt lgkmcnt({c})'); done[0] = len(issued) - c
    for s in range(8): lds(f'ds_read_b128 v[{XK+4*s}:{XK+4*s+3}], v{(207, 1)[s & 1]} offset:{2048*(s >> 1)}', ('x', s))
    vlab = a.lab('vpath'); join = a.lab('join')
    a(f's_cmp_eq_u32 s48, 1\ns_cbranch_scc1 {vlab}')
    for half in range(2):
        if half == 1: a(f's_branch {join}\n{vlab}:'); del issued[8:]; done[0] = 0
        for s in range(8):
            need({('x', s)})
            for ft in range(2):
                d = WF + 8*s + 4*ft; c = f'v[{KA_+4*ft}:{KA_+3+4*ft}]' if s else '0'
                A, B = (f'v[{d}:{d+3}]', f'v[{XK+4*s}:{XK+4*s+3}]')
                if half: A, B = B, A
                a(f'v_mfma_f32_16x16x32_bf16 v[{KA_+4*ft}:{KA_+3+4*ft}], {A}, {B}, {c}')
            if 1 <= s <= 4:
                for j in range(2): lds(hread(0, s-1, j), (0, s-1))
    a(f'{join}:')
    zer = [f'v_mov_b32 v{r}, 0' for r in list(range(Vb[1], Vb[1]+8)) + list(range(S[3], S[3]+16)) + list(range(O[0], O[0]+32)) + list(range(Lr[0], Lr[0]+8))]
    for st in range(16):
        r = []
        if st < 15:
            for ks in range(4):
                if st + 1 >= NPRE: r += [(x, (st+1, ks)) for x in wread(st+1, ks)]
                r += [(hread(st+1, ks, j), (st+1, ks)) for j in range(2)]
        per = len(r) // 8
        z = zer[8*(st-3):8*(st-2)] if 3 <= st < 11 else []
        need({(st, 0), 'part'} if st == 1 else {(st, 0)})
        if st == pflag: a('s_waitcnt vmcnt(0)')
        if qt == 2: a(f'v_writelane_b32 v249, s64, {3*st}\nv_writelane_b32 v249, s66, {3*st+1}\ns_memtime s[64:65]')
        if 0 < st < 15: a('s_barrier')
        if qt == 2: a(f'v_writelane_b32 v249, s68, {3*st+2}\ns_memtime s[66:67]')
        red = [[] for _ in range(8)]
        if st == 1:
            for w in range(4): lds(f'ds_read_b128 v[{KR+4*w}:{KR+3+4*w}], v205 offset:{8192*w}', 'red')
            red[3] = [f'v_add_f32 v{KR+j}, v{KR+j}, v{KR+4+j}' for j in range(4)] + [f'v_add_f32 v{KR+8+j}, v{KR+8+j}, v{KR+12+j}' for j in range(1)]
            red[4] = [f'v_add_f32 v{KR+8+j}, v{KR+8+j}, v{KR+12+j}' for j in range(1, 4)] + [f'v_add_f32 v{KR+j}, v{KR+j}, v{KR+8+j}' for j in range(2)]
            red[5] = [f'v_add_f32 v{KR+j}, v{KR+j}, v{KR+8+j}' for j in range(2, 4)] + [f'v_mul_f32 v{KR+j}, s56, v{KR+j}' for j in range(3)]
            red[6] = [f'v_mul_f32 v{KR+3}, s56, v{KR+3}', f'v_cvt_pk_bf16_f32 v{KR}, v{KR}, v{KR+1}', f'v_cvt_pk_bf16_f32 v{KR+1}, v{KR+2}, v{KR+3}', f'buffer_store_dwordx2 v[{KR}:{KR+1}], v206, s[28:31], s45 offen sc1']
        for i in range(8):
            ks, j = i >> 1, i & 1
            if j == 0: need({(st, ks)})
            a(f'v_mfma_f32_32x32x16_bf16 v[{ACC[j]}:{ACC[j]+15}], v[{wreg(st)[ks]}:{wreg(st)[ks]+3}], v[{hreg(st,ks,j)}:{hreg(st,ks,j)+3}], ' + ('0' if st == 0 and ks == 0 else f'v[{ACC[j]}:{ACC[j]+15}]'))
            if st == 0 and i == 1:
                lds(f'ds_write_b128 v205, v[{KA_}:{KA_+3}]', 'part'); lds(f'ds_write_b128 v205, v[{KA_+4}:{KA_+7}] offset:1024', 'part')
                a(f's_lshl_b32 s3, s95, 10\ns_add_u32 s3, s3, {KH}\nv_add_u32 v205, s3, v9')
            for y, key in r[per*i:per*i+per]: lds(y, key)
            if z: a(z[i])
            if st == 1 and i == 3: need({'red'})
            for y in red[i]: a(y)
            if st == 15 and i == 0: a(f'v_add_u32 v8, {QB}, v9\nv_add_u32 v10, 32768, v8\nv_add_u32 v11, 49152, v8\ns_mov_b32 s40, 49152')
        if qt == 2: a('s_memtime s[68:69]')
        if st == pflag:
            assert 2 <= pflag <= 5
            l = a.lab('nf')
            a(f's_cmp_lg_u32 s95, 0\ns_cbranch_scc1 {l}\ns_lshl_b32 s3, s2, 4\ns_add_u32 s3, s3, {KVF}\ns_mov_b64 exec, 1\nbuffer_store_dword v14, v9, s[32:35], s3 offen sc1\ns_mov_b64 exec, -1\n{l}:')
    if qt == 2:
        a('s_waitcnt lgkmcnt(0)')
        a(f's_add_u32 s84, s6, {0x9000000 + 0x40000}\ns_addc_u32 s85, s7, 0\ns_mov_b32 s86, 0x40000\ns_mov_b32 s87, 0x20000')
        a('s_lshl_b32 s88, s2, 10\ns_lshl_b32 s89, s95, 8\ns_add_u32 s88, s88, s89\nv_lshrrev_b32 v248, 2, v9\nbuffer_store_dword v249, v248, s[84:87], s88 offen')
    ls(18)
    for q in range(2):
        for j in range(8): a(f'v_cvt_pk_bf16_f32 v{Qr[q]+j}, v{ACC[q]+2*j}, v{ACC[q]+2*j+1}')
    a('s_barrier')
    a(f'ds_read_b128 v[{Kb[0]}:{Kb[0]+3}], v10\nds_read_b128 v[{Kb[0]+4}:{Kb[0]+7}], v10 offset:1024')
    def qk(D, kb, q, C):
        return [f'v_mfma_f32_32x32x16_bf16 v[{D}:{D+15}], v[{kb}:{kb+3}], v[{Qr[q]}:{Qr[q]+3}], {C}',
                f'v_mfma_f32_32x32x16_bf16 v[{D}:{D+15}], v[{kb+4}:{kb+7}], v[{Qr[q]+4}:{Qr[q]+7}], v[{D}:{D+15}]']
    def pv(Z, vb, q):
        return [f'v_smfmac_f32_32x32x32_bf16 v[{O[q]}:{O[q]+15}], v[{vb}:{vb+3}], v[{Z}:{Z+7}], v{IDX}',
                f'v_smfmac_f32_32x32x32_bf16 v[{O[q]}:{O[q]+15}], v[{vb+4}:{vb+7}], v[{Z+8}:{Z+15}], v{IDX}',
                f'v_smfmac_f32_16x16x64_bf16 v[{Lr[q]}:{Lr[q]+3}], v[{ONE}:{ONE+3}], v[{Z}:{Z+7}], v{IDX}',
                f'v_smfmac_f32_16x16x64_bf16 v[{Lr[q]}:{Lr[q]+3}], v[{ONE}:{ONE+3}], v[{Z+8}:{Z+15}], v{IDX}']
    def max16(d, X_, init):
        if init: a(f'v_max3_f32 v{d}, v{X_}, v{X_+1}, v{X_+2}\nv_max_f32 v{d}, v{d}, v{X_+15}'); r = range(3, 15, 2)
        else: r = range(0, 16, 2)
        for j in r: a(f'v_max3_f32 v{d}, v{d}, v{X_+j}, v{X_+j+1}')
    def setneg(off):
        for q in range(2):
            a(f'v_mov_b32 v5, v{3+q}\nv_permlane32_swap_b32 v5, v{3+q}\nv_max_f32 v5, v5, v{3+q}\nv_sub_f32 v{NM[q]}, {f32(-off)}, v5')
            for j in range(1, 16): a(f'v_mov_b32 v{NM[q]+j}, v{NM[q]}')
    a('s_waitcnt lgkmcnt(0)')
    for x in qk(S[1], Kb[0], 0, '0') + qk(S[2], Kb[0], 1, '0'): a(x)
    max16(3, S[1], True); max16(4, S[2], True)
    setneg(OFF)
    for x in qk(S[0], Kb[0], 0, f'v[{NM[0]}:{NM[0]+15}]'): a(x)
    a('s_mov_b32 s41, 16\ns_nop 9')
    ls(19); ls.flush(); stamp(a, 6, 1); stamp(a, 12, 0, cyc=True)
    M = a.lab('main')
    a(f'.p2align 6\n{M}:')
    for t in range(8):
        X_, Y, Z = S[t % 4], S[(t+1) % 4], S[(t-1) % 4]
        qn = (t+1) & 1; qp = (t-1) & 1
        m = qk(Y, Kb[((t+1) >> 1) & 1], qn, f'v[{NM[qn]}:{NM[qn]+15}]') + pv(Z, Vb[((t-1) >> 1) & 1], qp)
        m = [m[i] for i in order]
        post = [[] for _ in range(6)]
        if t % 2 == 0:
            j = t//2; b = Vb[j & 1]; off = j*4096 + 2048
            dv = [f'ds_read_b128 v[{b}:{b+3}], v10 offset:{off}', f'ds_read_b128 v[{b+4}:{b+7}], v10 offset:{off+1024}']
            j = t//2 + 1; b = Kb[j & 1]; va, off = (10, j*4096) if j < 4 else (11, 0)
            dk = [f'ds_read_b128 v[{b}:{b+3}], v{va} offset:{off}', f'ds_read_b128 v[{b+4}:{b+7}], v{va} offset:{off+1024}']
            for i, x in zip(rdpos, dk + dv): post[i].append(x)
        else:
            post[waitpos2].append('s_waitcnt lgkmcnt(0)')
        if t % 2 == 0 and waitpos is not None: post[waitpos].append('s_waitcnt lgkmcnt(2)')
        if t == 5: post[barpos].append('s_barrier')
        if t == 7:
            post[0] += ['s_add_u32 s40, s40, 16384', 's_and_b32 s40, s40, 0xffff']
            post[1] += ['s_sub_u32 s41, s41, 1', 's_cmp_lg_u32 s41, 0', 'v_mov_b32 v10, v11', 'v_add_u32 v11, s40, v8']
        e = [f'v_exp_f32 v{X_+i}, v{X_+i}' for i in range(16)]
        w = [2 if '32x32' in x else 1 for x in m]; tot = sum(w); acc = 0; used = 0
        for i, x in enumerate(m):
            a(x)
            for y in post[i]: a(y)
            acc += w[i]; upto = (16*acc + tot//2)//tot
            for y in e[used:upto]: a(y)
            used = upto
    a(f's_cbranch_scc1 {M}')
    stamp(a, 12, 1, cyc=True); stamp(a, 7, 0)
    for x in pv(S[3], Vb[1], 1): a(x)
    a('s_mov_b32 s47, 0')
    EP = a.lab('epi'); FB = a.lab('fallback'); DONE = a.lab('done')
    a(f'{EP}:')
    a(f'v_rcp_f32 v3, v{Lr[0]}')
    a(f'v_mov_b32 v6, 0\nv_mov_b32 v7, 0\nv_mov_b32 v14, 0\nv_mov_b32 v15, 0\ns_mov_b32 s44, {f32(2.0**100)}')
    for q in range(2):
        if q == 1: a(f'v_rcp_f32 v4, v{Lr[1]}\ns_add_u32 s48, s46, 65536')
        for j in range(0, 16, 2):
            c = 6 if (j & 2) else 14
            a(f'v_pk_fma_f32 v[{c}:{c+1}], v[{O[q]+j}:{O[q]+j+1}], 0, v[{c}:{c+1}]')
        for j in range(16): a(f'v_mul_f32 v{S[q]+j}, v{O[q]+j}, v{3+q}')
        for j in range(8): a(f'v_cvt_pk_bf16_f32 v{S[2]+8*q+j}, v{S[q]+2*j}, v{S[q]+2*j+1}')
        for j in range(2): a(f'buffer_store_dwordx4 v[{S[2]+8*q+4*j}:{S[2]+8*q+4*j+3}], v13, s[24:27], s{46+2*q} offen offset:{512*j}{common.ST}')
    a('v_add_f32 v6, v6, v7\nv_add_f32 v14, v14, v15\nv_cmp_u_f32 s[50:51], v6, v14')
    a(f'v_cmp_nge_f32 s[52:53], s44, v{Lr[0]}\nv_cmp_nge_f32 s[54:55], s44, v{Lr[1]}')
    a('s_or_b64 s[50:51], s[50:51], s[52:53]\ns_or_b64 s[50:51], s[50:51], s[54:55]')
    a(f's_cbranch_scc1 {FB}')
    a(f'{DONE}:')
    stamp(a, 2, 1)
    a('s_endpgm')
    a(f'{FB}:')
    a(f's_cmp_eq_u32 s47, 1\ns_cbranch_scc1 {DONE}\ns_mov_b32 s47, 1\ns_waitcnt vmcnt(0)')
    a('v_mov_b32 v3, 0xff800000\nv_mov_b32 v4, 0xff800000\ns_mov_b32 s40, 0')
    F1 = a.lab('f1'); F2 = a.lab('f2')
    a(f'{F1}:')
    a(f'buffer_load_dwordx4 v[{Kb[0]}:{Kb[0]+3}], v9, s[28:31], s40 offen sc1\nbuffer_load_dwordx4 v[{Kb[0]+4}:{Kb[0]+7}], v9, s[28:31], s40 offen offset:1024 sc1')
    a('s_waitcnt vmcnt(0)')
    for x in qk(S[1], Kb[0], 0, '0') + qk(S[2], Kb[0], 1, '0'): a(x)
    max16(3, S[1], False); max16(4, S[2], False)
    a(f's_add_u32 s40, s40, 4096\ns_cmp_lt_u32 s40, 262144\ns_cbranch_scc1 {F1}')
    setneg(11.0)
    for j in range(32): a(f'v_mov_b32 v{O[0]+j}, 0')
    for j in range(8): a(f'v_mov_b32 v{Lr[0]+j}, 0')
    a(f's_mov_b32 s40, 0\n{F2}:')
    for j in range(2):
        a(f'buffer_load_dwordx4 v[{Kb[0]+4*j}:{Kb[0]+4*j+3}], v9, s[28:31], s40 offen offset:{1024*j} sc1')
        a(f'buffer_load_dwordx4 v[{Vb[0]+4*j}:{Vb[0]+4*j+3}], v9, s[28:31], s40 offen offset:{2048+1024*j} sc1')
    a('s_waitcnt vmcnt(0)')
    for q in range(2):
        for x in qk(S[q], Kb[0], q, f'v[{NM[q]}:{NM[q]+15}]'): a(x)
    for q in range(2):
        for i in range(16): a(f'v_exp_f32 v{S[q]+i}, v{S[q]+i}')
    for q in range(2):
        for x in pv(S[q], Vb[0], q): a(x)
    a(f's_add_u32 s40, s40, 4096\ns_cmp_lt_u32 s40, 262144\ns_cbranch_scc1 {F2}')
    a(f's_branch {EP}')

    a(f'{ld}:')
    ls.pend, ls.k = s0
    if hp0: a(f's_setprio {hp0}')
    XH = 64
    xr = lambda s, j: XH + 8*s + 4*j
    a('s_sub_u32 s42, s95, 4\nv_lshlrev_b32 v11, 4, v2\nv_lshrrev_b32 v30, 3, v2\nv_and_b32 v31, 7, v2\ns_lshl_b32 s3, s95, 2\ns_and_b32 s3, s3, 4\nv_xor_b32 v31, s3, v31')
    a('s_lshl_b32 s3, s13, 1\ns_and_b32 s3, s3, 12\nv_add_u32 v28, s3, v30\nv_and_b32 v28, 15, v28')
    a('v_lshlrev_b32 v28, 11, v28\nv_lshl_add_u32 v28, v31, 4, v28\nv_xor_b32 v29, 16384, v28\nv_mov_b32 v9, 0')
    a('s_lshl_b32 s43, s12, 17\ns_lshl_b32 s3, s42, 15\ns_add_u32 s43, s43, s3\ns_mov_b32 s47, s94')
    a('s_waitcnt lgkmcnt(0)')
    srd_in(a, 20, 4, 'x'); srd_ws(a, 32, 6, 'HO')
    ldptr(a, 52, 'w1'); ldptr(a, 54, 'w2'); ldptr(a, 56, 'wo')
    vm = []
    def vmw(key):
        a(f's_waitcnt vmcnt({len(vm) - 1 - max(i for i, k_ in enumerate(vm) if k_ == key)})')
    def xld(s):
        a('s_lshr_b32 s3, s47, 21\ns_add_u32 s3, s3, s43\ns_add_u32 s47, s47, s49')
        for j in range(2): a(f'buffer_load_dwordx4 v[{xr(s,j)}:{xr(s,j)+3}], v{28+j}, s[20:23], s3 offen'); vm.append(s)
    for s in range(xa):
        xld(s)
        if s == 1: a(f's_mov_b32 s3, {TAG}\nbuffer_load_dword v10, v9, s[32:35], s3 offen sc1'); vm.append('t')
    ls(1)
    R = 32
    a(f's_lshl_b32 s40, s42, 11\ns_add_u32 s41, s40, 8192\ns_add_u32 s44, s40, 16384\ns_add_u32 s45, s40, 24576')
    gl = [f'buffer_load_dwordx4 v[{R+16*u+4*s_}:{R+16*u+4*s_+3}], v11, s[32:35], s{(40, 41, 44, 45)[s_]} offen offset:{1024*u} sc1' for u in range(2) for s_ in range(4)]
    srd_in(a, 24, 8, 'c')
    a('v_lshlrev_b32 v3, 3, v2\ns_lshr_b32 s3, s2, 6\ns_lshl_b32 s3, s3, 9\nbuffer_load_dwordx2 v[0:1], v3, s[24:27], s3 offen'); vm.append('c')
    srd_in(a, 16, 70, 'wq')
    a(f'v_lshlrev_b32 v3, 5, v31\nv_add_u32 v3, {DB}, v3')
    a(f's_lshl_b32 s3, s42, 2\nv_add_u32 v9, s3, v30\nv_xor_b32 v9, v9, v31\nv_lshlrev_b32 v9, 4, v9\nv_lshl_add_u32 v9, v31, 8, v9\nv_add_u32 v9, {KH}, v9\ns_lshl_b32 m0, s42, 11')
    wq_gather(5, 12, 42)
    a('s_mov_b32 s60, 0x04000c0c\ns_mov_b32 s50, 0x0706000c\ns_lshr_b32 s3, s94, 20\ns_sub_u32 s3, s40, s3')
    a(f'v_add_u32 v16, s3, v11\nv_add_u32 v19, 1024, v16\nv_and_b32 v16, 0xfff, v16\nv_and_b32 v19, 0xfff, v19\ns_lshr_b32 s3, s42, 1\ns_lshl_b32 s3, s3, 12\ns_add_u32 s3, s3, {DB}')
    a('v_add_u32 v16, s3, v16\nv_add_u32 v19, s3, v19\ns_mov_b32 s46, 0x3f803f80\ns_mov_b32 s51, 0x9e3779b1')
    a(f's_lshl_b32 s3, s42, 2\ns_add_u32 s3, s3, {FL}\nv_mov_b32 v18, s3\nv_mov_b32 v17, 0\nds_write_b32 v18, v17')
    SA = 20
    if dot == 'c':
        for c in range(8): a(f'v_mov_b32 v{SA+c}, 0')
    for s in range(16):
        vmw(s)
        if s == 0: ls(3)
        if s == 8: ls(4)
        if s == 15: ls(5)
        if s == 2: a('v_mul_lo_u32 v10, v10, s51\nv_add_u32 v10, 0x7f4a7c15, v10')
        for r in range(4):
            for j in range(2):
                x_ = xr(s, j) + r; c1 = SA + 2*j + (r & 1); c2 = c1 + 4; first = s == 0 and r < 2
                if dot == 'c': a(f'v_dot2c_f32_bf16 v{c1}, s46, v{x_}\nv_dot2c_f32_bf16 v{c2}, v{x_}, v{x_}')
                else:
                    a(f'v_dot2_f32_bf16 v{c1}, v{x_}, s46, ' + ('0' if first else f'v{c1}'))
                    a(f'v_dot2_f32_bf16 v{c2}, v{x_}, v{x_}, ' + ('0' if first else f'v{c2}'))
        if s + xa < 16: xld(s + xa)
        if s == swp:
            for x in gl: a(x.replace(' sc1', sw1)); vm.append('g')
            if not slate: a('s_waitcnt lgkmcnt(0)\ns_barrier')
    a(f's_mul_i32 s3, s49, 12\ns_add_u32 s47, s47, s3')
    for c in range(0, 8, 2): a(f'v_add_f32 v{SA+c}, v{SA+c}, v{SA+c+1}')
    for d in ('quad_perm:[1,0,3,2]', 'quad_perm:[2,3,0,1]', 'row_half_mirror'):
        for c in range(0, 8, 2): a(f'v_add_f32_dpp v{SA+c}, v{SA+c}, v{SA+c} {d} row_mask:0xf bank_mask:0xf')
    RN = 12
    for j in range(2):
        a(f'v_mul_f32 v{SA+1+2*j}, {f32(-1/1024)}, v{SA+2*j}\nv_mul_f32 v{SA+5+2*j}, {f32(1/1024)}, v{SA+4+2*j}')
    for j in range(2):
        a(f'v_fma_f32 v{SA+5+2*j}, -v{SA+1+2*j}, v{SA+1+2*j}, v{SA+5+2*j}\nv_max_f32 v{SA+5+2*j}, 0, v{SA+5+2*j}\nv_add_f32 v{SA+5+2*j}, {f32(1e-5)}, v{SA+5+2*j}')
    for j in range(2): a(f'v_rsq_f32 v{RN+2*j}, v{SA+5+2*j}')
    for j in range(2): a(f'v_mul_f32 v{RN+1+2*j}, v{SA+1+2*j}, v{RN+2*j}')
    ls(6)
    sw = a.lab('sw'); swo = a.lab('swo'); ng = a.lab('ng')
    a(f's_mov_b32 s59, 0x100000\ns_waitcnt vmcnt(0)')
    ls(7)
    a(f'{sw}:')
    a(f'v_xor_b32 v17, v{R+3}, v10')
    for i in range(1, 8): a(f'v_bitop3_b32 v17, v17, v{R+4*i+3}, v10 bitop3:0xf6')
    a(f'v_cmp_ne_u32 vcc, 0, v17\ns_cbranch_vccz {swo}')
    for i in range(8): a(f'v_cmp_ne_u32 vcc, v{R+4*i+3}, v10\ns_mov_b64 exec, vcc\n{gl[i]}\ns_mov_b64 exec, -1')
    a(f's_waitcnt vmcnt(0)\ns_sub_u32 s59, s59, 1\ns_cbranch_scc0 {sw}\n{swo}:')
    if slate: a('s_waitcnt lgkmcnt(0)\ns_barrier')
    ls(8)
    if common.STAMPS: a('s_sub_u32 s92, 0x100001, s59\nv_writelane_b32 v247, s92, 63')
    for u in range(2):
        b = R + 16*u
        for s_ in range(4):
            d = b + 4*s_
            a(f'v_perm_b32 v{d+3}, v{d}, v{d+1}, s60\nv_perm_b32 v{d+3}, v{d+3}, v{d+2}, s50')
        for j in (0, 2, 8, 10): a(f'v_pk_add_f32 v[{b+j}:{b+j+1}], v[{b+j}:{b+j+1}], v[{b+j+4}:{b+j+5}]')
        for j in (0, 2): a(f'v_pk_add_f32 v[{b+j}:{b+j+1}], v[{b+j}:{b+j+1}], v[{b+j+8}:{b+j+9}]')
    for u in range(2):
        for j in (0, 2): rnd(R+16*u+j, R+16*u+j+1, R+16*u+4+j)
    a(f's_cmp_lt_u32 s42, 2\ns_cbranch_scc1 {ng}')
    for u in range(2):
        for j in (0, 2): a(f'v_pk_add_f32 v[{R+16*u+j}:{R+16*u+j+1}], v[{R+16*u+j}:{R+16*u+j+1}], 1.0 op_sel_hi:[1,0]')
    for u in range(2):
        for j in (0, 2): rnd(R+16*u+j, R+16*u+j+1, R+16*u+4+j)
    a(f'{ng}:\nds_write_b128 v16, v[{R}:{R+3}]\nds_write_b128 v19, v[{R+16}:{R+19}]\nv_mov_b32 v17, -1\nds_write_b32 v18, v17\nv_mov_b32 v18, {FL}')
    TT = 192
    def gs(st):
        b = 32 + 16*(st & 1)
        a(f'ds_read_b128 v[{b}:{b+3}], v3 offset:{4096+256*st}\nds_read_b128 v[{b+4}:{b+7}], v3 offset:{4096+256*st+16}')
        a(f'ds_read_b128 v[{b+8}:{b+11}], v3 offset:{256*st}\nds_read_b128 v[{b+12}:{b+15}], v3 offset:{256*st+16}')
    def hw(st): return [f'ds_write_addtid_b32 v{xr(st,j)+r} offset:{(st % 4)*8192 + 1024*j + 256*r}' for j in range(2) for r in range(4)]
    def norm(st):
        for j in range(2):
            for r in range(4): unp(TT+8*j+2*r, TT+8*j+2*r+1, xr(st, j)+r)
        for j in range(2):
            for r in range(4):
                t = TT+8*j+2*r; q = RN+2*j
                a(f'v_pk_fma_f32 v[{t}:{t+1}], v[{t}:{t+1}], v[{q}:{q+1}], v[{q}:{q+1}] op_sel:[0,0,1] op_sel_hi:[1,0,1]')
    norm(0)
    ls(9)
    fw = a.lab('fw'); fo = a.lab('fo')
    a(f's_mov_b32 s59, 0x100000\n{fw}:\nds_read_b128 v[20:23], v18')
    gs(0); gs(1)
    a('s_waitcnt lgkmcnt(8)\nv_and_b32 v20, v20, v21\nv_and_b32 v22, v22, v23\nv_and_b32 v20, v20, v22\nv_cmp_ne_u32 vcc, -1, v20')
    a(f's_cbranch_vccz {fo}\ns_waitcnt lgkmcnt(0)\ns_sub_u32 s59, s59, 1\ns_cbranch_scc0 {fw}\n{fo}:')
    ls(10)
    last = []; now = []; late = []
    for st in range(17):
        if st in bars: ls(20 + 2*bars.index(st)); a('s_barrier'); ls(21 + 2*bars.index(st))
        if st == bars[0]: now = late + now; late = []
        main = a.lines; a.lines = []
        if 0 < st < 16: norm(st)
        if st < 16:
            b = 32 + 16*(st & 1)
            a(f's_waitcnt lgkmcnt({4 if st < 15 else 0})')
            for j in range(2):
                for r in range(4):
                    t = TT+8*j+2*r
                    a(f'v_pk_fma_f32 v[{t}:{t+1}], v[{t}:{t+1}], v[{b+2*r}:{b+2*r+1}], v[{b+8+2*r}:{b+8+2*r+1}]')
            g0 = len(a.lines)
            if st + 2 < 16: gs(st+2)
            gl_ = a.lines[g0:]; a.lines = a.lines[:g0]
            for j in range(2):
                for r in range(4):
                    a(f'v_cvt_pk_bf16_f32 v{xr(st,j)+r}, v{TT+8*j+2*r}, v{TT+8*j+2*r+1}')
                    if gl_ and r & 1: a(gl_.pop(0))
        body = a.lines; a.lines = main
        pos = wpos if len(now) <= 2 else (2, 9, 16, 28)
        for n, x in enumerate(body):
            if n in pos and now: a(now.pop(0))
            a(x)
        if st == 16:
            for p_ in now: a(p_)
            if last:
                a('s_mov_b32 exec_hi, 0')
                for p_ in last: a(p_.split('\n')[1])
                a('s_mov_b32 exec_hi, -1')
        if st < 16:
            kw = [f's_mov_b32 exec_hi, 0\nds_write_b128 v9, v[{xr(st,0)}:{xr(st,0)+3}] offset:{2048*st}\ns_mov_b32 exec_hi, -1']
            hw_ = ['\n'.join(hw(st)[4*j:4*j+4]) for j in range(2)] if st < 3 else []
            if kwl: last += kw; kw = []
            if st + 1 < bars[0]:
                late += kw
                if st < 2: now += hw_
                else: late += hw_
            else: now += kw + hw_
        if st == 7: ls(12)
    ls(15)
    a('s_waitcnt lgkmcnt(0)\ns_barrier')
    if hp0 != hpq: a(f's_setprio {hpq}')
    main = a.lines; a.lines = []
    S1, S2 = KA1 // 64, KC2 // 64
    a('s_and_b32 s48, s42, 1')
    t3, t4, t5, t6, t7, t8, t9 = range(32, 39)
    a(f'v_and_b32 v{t3}, 15, v2\nv_lshrrev_b32 v{t4}, 4, v2\nv_lshrrev_b32 v{t5}, 2, v2\nv_and_b32 v{t5}, 3, v{t5}\nv_and_b32 v{t6}, 3, v2\ns_mov_b32 s43, 7168')
    for i in range(7):
        a(f'v_add_u32 v{t7}, {4*i}, v{t4}\nv_mul_u32_u24 v{t8}, 9363, v{t7}\nv_lshrrev_b32 v{t8}, 16, v{t8}')
        a(f'v_mul_u32_u24 v{t9}, 7, v{t8}\nv_sub_u32 v{t9}, v{t7}, v{t9}\nv_and_b32 v{t7}, 1, v{t8}\nv_lshlrev_b32 v{t7}, 1, v{t7}\nv_xor_b32 v{t7}, v{t7}, v{t6}')
        a(f'v_lshl_add_u32 v{t8}, v{t8}, 2, v{t5}\nv_mul_u32_u24 v{t8}, s43, v{t8}\nv_lshl_add_u32 v{t8}, v{t9}, 6, v{t8}\nv_lshl_add_u32 v{12+i}, v{t7}, 4, v{t8}')
    n1 = S1 // 2; n2 = S2 // 4
    assert S1 % 2 == 0 and S2 % 4 == 0 and 14 + n1 + n2 + 4 == 32
    a('s_lshr_b32 s3, s2, 7\ns_lshl_b32 s3, s3, 7')
    a(f'v_lshlrev_b32 v20, 11, v{t5}\nv_lshl_add_u32 v20, v{t4}, 6, v20\nv_lshl_add_u32 v20, v{t6}, 4, v20\nv_xor_b32 v20, s3, v20')
    a(f's_mul_i32 s3, s48, {n1}\ns_and_b32 s3, s3, 1\ns_lshl_b32 s3, s3, 5\nv_xor_b32 v20, s3, v20\nv_xor_b32 v21, 32, v20')
    a(f'v_lshrrev_b32 v{t7}, 1, v{t4}\nv_lshl_add_u32 v{t9}, v{t7}, 2, v{t5}\nv_and_b32 v{t8}, 1, v{t4}\nv_lshlrev_b32 v{t8}, 6, v{t8}')
    a(f'v_lshl_add_u32 v22, v{t9}, 11, v{t8}\nv_lshlrev_b32 v{t7}, 1, v{t7}\nv_xor_b32 v{t7}, v{t7}, v{t6}\nv_lshl_add_u32 v22, v{t7}, 4, v22')
    a(f's_mov_b32 s43, 12288\nv_mul_u32_u24 v23, s43, v{t9}\nv_add_u32 v23, v23, v{t8}\nv_lshl_add_u32 v23, v{t6}, 4, v23\nv_xor_b32 v24, 32, v23')
    a(f'v_lshlrev_b32 v{t8}, 10, v{t4}\nv_lshl_add_u32 v{t8}, v{t5}, 6, v{t8}\nv_lshl_add_u32 v{t8}, v{t6}, 3, v{t8}\nv_and_b32 v{t7}, 1, v{t4}\nv_lshl_add_u32 v{t8}, v{t7}, 5, v{t8}')
    a(f's_lshl_b32 s3, s48, 8\ns_add_u32 s3, s3, {AB}\nv_add_u32 v25, s3, v{t8}\nv_xor_b32 v26, 32, v25')
    a(f'v_lshlrev_b32 v27, 4, v{t4}\ns_lshl_b32 s3, s48, 9\ns_add_u32 s3, s3, {HB}\nv_add_u32 v31, s3, v27\nv_lshlrev_b32 v30, 3, v2\nv_add_u32 v30, s3, v30')
    a(f'v_mov_b32 v{t7}, 0x7ff00000\nv_cmp_eq_u32 vcc, 0, v{t3}\nv_cndmask_b32 v27, v{t7}, v27, vcc')
    a('s_lshr_b32 s58, s2, 4\ns_and_b32 s59, s2, 15')
    a(f's_mul_i32 s60, s58, {64*7168}\ns_mul_i32 s3, s48, {32*7168}\ns_add_u32 s60, s60, s3\ns_mul_i32 s3, s59, 448\ns_add_u32 s60, s60, s3')
    a(f's_lshl_b32 s61, s59, 4\ns_add_u32 s61, s61, s58\ns_lshl_b32 s61, s61, 1\ns_add_u32 s61, s61, s48\ns_mul_i32 s61, s61, 14336')
    a(f's_lshr_b32 s3, s2, 3\ns_lshl_b32 s3, s3, 1\ns_add_u32 s3, s3, s48\ns_mul_i32 s3, s3, {n1}\ns_and_b32 s43, s2, 7')
    a(f's_lshl_b32 s62, s3, 13\ns_lshl_b32 s63, s43, 8\ns_add_u32 s62, s62, s63\ns_mul_i32 s63, s43, {32*S1}\ns_add_u32 s63, s63, s3\ns_lshl_b32 s63, s63, 10')
    if common.K6MAP: a(f's_lshr_b32 s3, s2, 6\ns_mul_i32 s3, s3, {(14-n1)*131072}\ns_add_u32 s62, s62, s3')
    a(f's_lshl_b32 s43, s58, 1\ns_add_u32 s43, s43, s48\ns_mul_i32 s3, s43, {n2}')
    a(f's_lshl_b32 s64, s3, 14\ns_lshl_b32 s65, s59, 7\ns_add_u32 s64, s64, s65')
    if common.K6MAP: a(f's_lshr_b32 s65, s43, 3\ns_add_u32 s65, s65, 1\ns_mul_i32 s65, s65, {n1*131072}\ns_add_u32 s64, s64, s65')
    else: a(f's_add_u32 s64, s64, {2*KA1*2048}')
    a(f's_mul_i32 s65, s59, {8*S2}\ns_add_u32 s65, s65, s3\ns_lshl_b32 s65, s65, 10\ns_add_u32 s65, s65, {16*S1*16384}')
    a(f's_lshl_b32 s66, s43, 16\ns_lshl_b32 s3, s59, 7\ns_add_u32 s66, s66, s3\ns_lshl_b32 s67, s59, 5\ns_add_u32 s67, s67, s43\ns_lshl_b32 s67, s67, 12')
    a(f's_lshr_b32 s58, s2, 6\ns_and_b32 s59, s2, 63\ns_lshl_b32 s3, s58, 1\ns_add_u32 s3, s3, s48\ns_mul_i32 s68, s3, {128*12288}\ns_lshl_b32 s3, s59, 7\ns_add_u32 s68, s68, s3\ns_add_u32 s68, s68, 4096')
    a(f's_lshl_b32 s69, s48, 14\ns_add_u32 s69, s69, {AB}')
    a(f's_mul_i32 s51, s58, {6144*4}\ns_lshl_b32 s3, s59, 8\ns_add_u32 s51, s51, s3\ns_lshl_b32 s3, s48, 7\ns_add_u32 s51, s51, s3\ns_add_u32 s51, s51, 8192')
    srd_in(a, 24, 56, 'wo'); srd_ws(a, 32, 6, 'W2T'); srd_in(a, 72, 10, 'wmod'); srd_ws(a, 80, 6, 'MODP'); srd_in(a, 20, 54, 'w2'); srd_ws(a, 76, 6, 'WOT')
    setup = a.lines; a.lines = main
    setup_late = setup; setup = []; per = 0
    WV = {12: 192, 13: 208, 14: 224, 15: 64}
    srd_ws(a, 28, 6, 'KV')
    a(f'v_add_u32 v28, s98, v11\nv_add_u32 v29, {QB}, v28\nv_add_u32 v28, {AB}, v28\ns_mov_b32 s44, {KVF}\ns_mov_b32 s46, 0')
    for x in hw(3): a(x)
    def wvl(st):
        a('s_lshr_b32 s99, s47, 11\ns_add_u32 s99, s99, s97\ns_add_u32 s47, s47, s49')
        for i in range(4): a(f'buffer_load_dwordx4 v[{WV[st]+4*i}:{WV[st]+4*i+3}], v{5+i}, s[16:19], s99 offen offset:{1024*i}')
    wvl(12)
    ww = [(st, i) for st in WV for i in range(4)]
    pl = [f'buffer_load_dword v{40+j}, v11, s[36:39], s44 offen offset:{1024*j} sc1' for j in range(4)]
    def kvchk():
        a('s_waitcnt vmcnt(0)\nv_xor_b32 v40, v40, v10\n' + '\n'.join(f'v_bitop3_b32 v40, v40, v{40+j}, v10 bitop3:0xf6' for j in range(1, 4)) + '\nv_cmp_ne_u32 vcc, 0, v40')
    def kvgo():
        ls(17, True)
        a(f's_add_u32 m0, s98, {QB + 32768}')
        for i in range(4): a(f'buffer_load_dwordx4 v11, s[28:31], s98 offen offset:{1024*i} sc1 lds')
        a('s_lshl_b32 m0, s42, 11')
        a('s_mov_b32 s46, 1')
    nl = 8
    for i in range(1, 15):
        def tr(n):
            if qt == 1: a(f's_memtime s[{84+2*n}:{85+2*n}]')
        a(f's_waitcnt lgkmcnt({nl})')
        if qt == 1 and i > 1:
            for n in range(3): a(f'v_writelane_b32 v249, s{84+2*n}, {4*(i-1)+n}')
        tr(3)
        a('s_barrier')
        tr(0)
        if qt == 1: a(f's_waitcnt lgkmcnt(0)\nv_writelane_b32 v249, s90, {4*(i-1)+3}')
        chunk = []
        while setup and (len(chunk) < per or setup[0].startswith('s_addc')): chunk.append(setup.pop(0))
        wr = ['\n'.join(hw(i+3)[4*j:4*j+4]) for j in range(2)] if i + 3 <= 15 else []
        nl = 4*len(wr)
        if ww and i >= wst[ww[0][0] - 12]:
            for st, p_ in ww[:2]:
                assert i >= {12: 2, 13: 2, 14: 7, 15: 8}[st] and i <= st - 3
                if p_ == 0: wr.append(f's_waitcnt vmcnt({4*(min(15, 12+i-1)-st)})')
                vb, o = (29, SLOT[st] - QB) if SLOT[st] >= QB else (28, SLOT[st] - AB)
                wr.append(f'ds_write_b128 v{vb}, v[{WV[st]+4*p_}:{WV[st]+4*p_+3}] offset:{o + 1024*p_}'); nl += 1
            del ww[:2]
        k_ = -(-len(chunk) // 4)
        while wr or chunk:
            if wr:
                x = wr.pop(0); a(x)
                if x.startswith('s_waitcnt'): a(wr.pop(0))
            n = 0
            while chunk and (n < k_ or chunk[0].startswith('s_addc')): a(chunk.pop(0)); n += 1
        if i <= 3: wvl(12+i)
        tr(1)
        if i == ppoll:
            srd_ws(a, 36, 6, 'HO')
            for x in pl: a(x)
        if i == pchk:
            assert pchk >= 10
            l = a.lab('nck'); l2 = a.lab('nck')
            kvchk(); a(f's_cbranch_vccnz {l}'); kvgo(); a(f's_branch {l2}\n{l}:')
            for x in pl: a(x)
            a(f'{l2}:')
        tr(2)
    assert not setup and not ww
    l = a.lab('kvd'); p0 = a.lab('p0'); p1 = a.lab('p1')
    a(f's_cmp_eq_u32 s46, 1\ns_cbranch_scc1 {l}\ns_mov_b32 s46, 0x100000\n{p0}:')
    kvchk(); a(f's_cbranch_vccz {p1}')
    for x in pl: a(x)
    a(f's_sub_u32 s46, s46, 1\ns_cbranch_scc0 {p0}\n{p1}:')
    kvgo()
    l3 = a.lab('nt')
    a(f'{l}:\ns_lshl_b32 s3, s2, 2\ns_add_u32 s3, s3, s42\ns_cmp_lg_u32 s3, 0\ns_cbranch_scc1 {l3}\ns_mov_b32 s3, {TAG}\ns_mov_b64 exec, 1\nbuffer_store_dword v10, v11, s[36:39], s3 offen sc1\ns_mov_b64 exec, -1\n{l3}:')
    if common.STAMPS: a('s_waitcnt vmcnt(0)')
    ls(26); ls.flush()
    if hpq: a('s_setprio 0')
    if qt == 1:
        a('s_waitcnt lgkmcnt(0)')
        a(f's_add_u32 s84, s6, {0x9000000 + 0x40000}\ns_addc_u32 s85, s7, 0\ns_mov_b32 s86, 0x40000\ns_mov_b32 s87, 0x20000')
        a('s_lshl_b32 s88, s2, 10\ns_lshl_b32 s89, s42, 8\ns_add_u32 s88, s88, s89\nv_lshrrev_b32 v248, 2, v11\nbuffer_store_dword v249, v248, s[84:87], s88 offen')
    PF = a.lab('pf')
    a(f's_cmp_ge_u32 s42, 2\ns_cbranch_scc1 {PF}')
    a('s_lshl_b32 s46, s42, 13\ns_add_u32 s47, s46, 49152\ns_add_u32 s46, s46, 16384')
    KL = a.lab('kvl')
    K1_ = a.lab('kv1')
    a(f's_mov_b32 s41, 18\ns_branch {K1_}\n{KL}:')
    a(f's_waitcnt vmcnt(8)\ns_barrier\n{K1_}:')
    for g_ in range(2):
        a(f's_add_u32 m0, s47, {QB + 4096*g_}')
        for i in range(4): a(f'buffer_load_dwordx4 v11, s[28:31], s46 offen offset:{1024*i}{kvs} lds')
        a(f's_add_u32 s46, s46, {4096 if g_ == 0 else 12288}')
    a('s_add_u32 s47, s47, 16384\ns_and_b32 s47, s47, 0xffff')
    a(f's_sub_u32 s41, s41, 1\ns_cmp_lg_u32 s41, 0\ns_cbranch_scc1 {KL}')
    a('s_waitcnt vmcnt(0)')
    stamp(a, 2, 1)
    a('s_endpgm')
    a(f'{PF}:')
    srd_in(a, 16, 52, 'w1'); srd_ws(a, 28, 6, 'W1T')
    a(f's_mov_b32 s50, {f32(-LOG2E)}')
    for j in range(2): unpk(a, 32+2*j, 33+2*j, j)
    for j in range(4): a(f'v_mul_f32 v{36+j}, s50, v{32+j}')
    for j in range(4): a(f'v_exp_f32 v{36+j}, v{36+j}')
    for j in range(4): a(f'v_add_f32 v{36+j}, 1.0, v{36+j}')
    for j in range(4): a(f'v_rcp_f32 v{36+j}, v{36+j}')
    for j in range(4): a(f'v_mul_f32 v{32+j}, v{32+j}, v{36+j}')
    a('v_cvt_pk_bf16_f32 v0, v32, v33\nv_cvt_pk_bf16_f32 v1, v34, v35')
    a('s_waitcnt vmcnt(0)')
    for j in range(pf_delay): a('s_barrier')
    for x in setup_late: a(x)
    RG = 32; BF = 96
    a('ds_write_b64 v30, v[0:1]')
    for kb in range(8): a(f'ds_read_b128 v[{BF+4*kb}:{BF+4*kb+3}], v31 offset:{64*kb}')
    units = []
    for u in range(4): units.append((24, 22, 66, 16384, 76, 67))
    for u in range(14): units.append((16, 12 + u % 7, 60, 16*7168 if u == 6 else 0, 28, 61))
    for u in range(n1): units.append((20, 20 + (u & 1), 62, 8192, 32, 63))
    for u in range(n2): units.append((20, 22, 64, 16384, 32, 65))
    nb = pf_delay
    assert pf_delay >= 1
    L = lambda i: 6 if 0 <= i < 8 else 0
    for i in range(11):
        if 2 <= i < 10:
            b = i - 2
            a(f's_waitcnt vmcnt({(4 if i >= 3 else 0) + L(i-1)})')
            for j in range(4):
                sr, vo, ss, sadd, dr, dsr = units[4*b + j]; r = RG + 16*(b % 3) + 4*j
                a(f'buffer_store_dwordx4 v[{r}:{r+3}], v11, s[{dr}:{dr+3}], s{dsr} offen{rst}\ns_add_u32 s{dsr}, s{dsr}, 1024')
        if i < 8:
            for j in range(2):
                a(f's_add_u32 m0, s69, {(2*i+j)*1024}\nbuffer_load_dwordx4 v{23+j}, s[72:75], s68 offen lds\ns_add_u32 s68, s68, {8*12288}')
            for j in range(4):
                sr, vo, ss, sadd, dr, dsr = units[4*i + j]; r = RG + 16*(i % 3) + 4*j
                a(f'buffer_load_dwordx4 v[{r}:{r+3}], v{vo}, s[{sr}:{sr+3}], s{ss} offen')
                if sadd: a(f's_add_u32 s{ss}, s{ss}, {sadd}')
        if i < 10: a('s_barrier'); nb += 1
    assert nb <= 17
    if hprio: a(f's_setprio {hprio}')
    AF = 128; DD = 192
    for kb in range(8):
        for nt in range(2):
            r = AF + 8*kb + 4*nt
            for h in range(2): a(f'ds_read_b64_tr_b16 v[{r+2*h}:{r+2*h+1}], v{25+nt} offset:{kb*4096 + h*512}')
    for kb in range(8):
        a(f's_waitcnt lgkmcnt({min(15, 28-4*kb)})')
        for nt in range(2):
            r = AF + 8*kb + 4*nt
            a(f'v_mfma_f32_16x16x32_bf16 v[{DD+4*nt}:{DD+4*nt+3}], v[{r}:{r+3}], v[{BF+4*kb}:{BF+4*kb+3}], ' + (f'v[{DD+4*nt}:{DD+4*nt+3}]' if kb else '0'))
    for nt in range(2): a(f'buffer_store_dwordx4 v[{DD+4*nt}:{DD+4*nt+3}], v27, s[80:83], s51 offen offset:{64*nt}')
    a('s_waitcnt vmcnt(0)')
    stamp(a, 2, 1)
    a(f'{end}:\ns_endpgm')
    return k
```

```python
import sys, os
sys.path.insert(0, os.path.dirname(__file__))
import common
from common import *
def build(path, stamps=False, verbose=False, opts=None):
    common.STAMPS = stamps
    common.QL = (opts or {}).get('ql', 0)
    common.K6MAP = (opts or {}).get('k6map', 1)
    common.ST = (opts or {}).get('st', '')
    import k12, k3, k3f, k3g, gemm
    opts = opts or {}
    fz = opts.get('fuse', 2)
    front = [k3g.k3g(**opts.get('k3', {}))] if fz == 2 else [k3f.k3f(**opts.get('k3', {}))] if fz else [k12.k1(**opts.get('k1', {})), k12.k2(**opts.get('k2', {})), k3.k3(**opts.get('k3', {}))]
    ks = front + [gemm.k4(**opts.get('k4', {})), gemm.k5(**opts.get('k5', {})), gemm.k6(**opts.get('k6', {}))]
    ref = open(f'cdna_kernels/{NAME}.s.ref').read().split('\n')
    hdr = [l for l in ref if l.startswith(';') and 'offset' in l or l.startswith('; Kernarg')]
    out = hdr[:]
    for k in ks: out.append(f'; @launch kernel={k.name} grid=({k.grid},1,1) block=({k.block},1,1) lds={k.lds}')
    out.append('.amdgcn_target "amdgcn-amd-amdhsa--gfx950"\n.text')
    for k in ks: out.append(k.text(verbose))
    out.append('.section .rodata,"a"')
    for k in ks: out.append(k.desc())
    open(path, 'w').write('\n'.join(out))
if __name__ == '__main__':
    args = [x for x in sys.argv[1:] if x.endswith('.s')]
    path = args[0] if args else f'cdna_kernels/{NAME}.s'
    opts = {}
    for x in sys.argv[1:]:
        if x.startswith('{'): opts = eval(x)
    build(path, stamps='stamps' in sys.argv, verbose='-v' in sys.argv, opts=opts)
```
